```python
import torch

def _softmax(x, axis=-1):
    return torch.softmax(x, dim=axis)
def _gelu(x):
    return torch.nn.functional.gelu(x, approximate="tanh")
def _silu(x):
    return torch.nn.functional.silu(x)
def _sigmoid(x):
    return torch.sigmoid(x)
def _layernorm(x, axis=-1, eps=1e-5):
    m = x.mean(dim=axis, keepdim=True)
    v = x.var(dim=axis, keepdim=True, unbiased=False)
    return (x - m) / torch.sqrt(v + eps)
def _scatter_add(tgt, idx, src, axis=0):
    return tgt.clone().index_add_(axis, idx, src)
def _segment_sum(src, seg, n):
    out = torch.zeros((n,) + src.shape[1:], dtype=src.dtype)
    return out.index_add_(0, seg, src)
def _pad(x, pw):
    flat = tuple(v for pair in reversed(pw) for v in pair)
    return torch.nn.functional.pad(x, flat)

kernel_name = 'standalone__deep_cross_fibinet__recsys'

def setup_inputs():

    _w = (lambda a: (lambda t: t.to(torch.bfloat16) if t.is_floating_point() else t)(torch.as_tensor(a)))
    B, F, D = 4096, 26, 64
    V = min(100000, 100000)
    Fr = max(F // 2, 1)
    H = min(F * D, 256)
    return {
        "idx": _w((lambda lo, hi, *s: torch.randint(lo, hi, s))(0, V, B, F).to(torch.int64)),
        "table": _w((lambda *s: torch.randn(*s, dtype=torch.bfloat16) * 1.6)(V, D)),
        "se_w1": _w((lambda *s: torch.randn(*s, dtype=torch.bfloat16) * 1.6)(F, Fr)),
        "se_w2": _w((lambda *s: torch.randn(*s, dtype=torch.bfloat16) * 1.6)(Fr, F)),
        "w_bi": _w((lambda *s: torch.randn(*s, dtype=torch.bfloat16) * 0.05)(D, D) * (D ** -0.5)),
        "w_cross": _w((lambda *s: torch.randn(*s, dtype=torch.bfloat16) * 0.05)(2 * F * F * D) * 0.01),
        "w_deep1": _w((lambda *s: torch.randn(*s, dtype=torch.bfloat16) * 0.8)(F * D, H) * ((F * D) ** -0.5)),
        "w_deep2": _w((lambda *s: torch.randn(*s, dtype=torch.bfloat16) * 0.05)(H) * 0.01),
    }

def reference(idx, table, se_w1, se_w2, w_bi, w_cross, w_deep1, w_deep2):
    emb = table[idx]
    B = emb.shape[0]
    z = emb.mean(axis=-1)
    a = _sigmoid(_gelu(z @ se_w1) @ se_w2)
    v = a[:, :, None] * emb
    eW = torch.einsum('bfd,de->bfe', emb, w_bi)
    vW = torch.einsum('bfd,de->bfe', v, w_bi)
    p = torch.einsum('bie,bje->bije', eW, emb).reshape(B, -1)
    q = torch.einsum('bie,bje->bije', vW, v).reshape(B, -1)
    cross_feat = torch.concatenate([p, q], axis=-1)
    logit_cross = cross_feat @ w_cross
    h = _gelu(emb.reshape(B, -1) @ w_deep1)
    logit_deep = h @ w_deep2
    return logit_cross + logit_deep
```

```python
import re, sys
src = open(sys.argv[1]).read().split("\n")
out = []
S_DBG = 28 + 4*9
nst = 0
def stamp(k):
    return [f"    s_memtime s[{4+2*k}:{5+2*k}]", "    s_waitcnt lgkmcnt(0)"]
i = 0
body = -1
while i < len(src):
    l = src[i]
    if l.strip() == "s_cbranch_scc1 L_end" and nst == 0:
        out.append(l)
        out.append("    s_memtime s[96:97]")
        out.append("    s_memrealtime s[98:99]")
        nst = 1
        i += 1; continue
    if "wait idx; build gather offsets" in l:
        out.append(l); out.append(src[i+1]); out += stamp(0); i += 2; continue
    if "---- p 0 field" in l:
        out.append(l); i += 1
        while src[i].strip() != "s_barrier": out.append(src[i]); i += 1
        out.append(src[i]); out += stamp(1); i += 1; continue
    if "---- p 8 field" in l:
        out.append(l); i += 1
        while src[i].strip() != "s_barrier": out.append(src[i]); i += 1
        out.append(src[i]); out += stamp(2); i += 1; continue
    if "4x4 lane-group transposition" in l:
        out += stamp(3); out.append(l); i += 1; continue
    if "; cross stage" in l:
        out += stamp(4); out.append(l); i += 1; continue
    if "wave 0: final sum" in l:
        out += stamp(5); out.append(l); i += 1; continue
    if l.strip() == "v_mov_b32 v193, 1":
        out += stamp(6)
        out.append("    s_and_b32 s79, s73, 1"); out.append("    s_lshl_b32 s79, s79, 4")
        out.append("    s_lshl_b32 s91, 1, s79")
        out.append("    v_mov_b32 v193, s91")
        assert src[i+1].strip() == "s_lshl_b32 s77, s73, 2"
        out.append("    s_lshr_b32 s77, s73, 1"); out.append("    s_lshl_b32 s77, s77, 2"); out.append("    s_add_u32 s77, s77, 64")
        i += 2; continue
    if l.strip() == "s_cmp_lg_u32 s78, 3":
        out += stamp(7)
        out.append("    s_lshr_b32 s78, s78, s79"); out.append("    s_and_b32 s78, s78, 0xffff")
        out.append(l)
        assert src[i+1].strip() == "s_cbranch_scc1 L_end"
        out.append("    s_cbranch_scc1 L_rep")
        i += 2; continue
    if l.strip().startswith("buffer_store_short"):
        out.append(l); out.append(src[i+1]); out.append("    s_branch L_rep"); i += 2; continue
    if l.strip() == "L_end:":
        out.append("    s_branch L_end")
        out.append("L_rep:")
        out.append("    s_memtime s[92:93]")
        out.append("    s_memrealtime s[94:95]")
        out.append("    s_waitcnt lgkmcnt(0)")
        out.append("    s_mov_b64 exec, 1")
        def amax(idx, sreg):
            out.append(f"    v_mov_b32 v2, {sreg}")
            out.append(f"    v_mov_b32 v3, {idx*4}")
            out.append(f"    buffer_atomic_umax v2, v3, s[{S_DBG}:{S_DBG+3}], 0 offen sc1")
            out.append("    s_nop 4")
        out.append("    s_not_b32 s100, s98"); amax(0, "s100")
        amax(1, "s94")
        out.append("    s_sub_u32 s100, s92, s96"); amax(2, "s100")
        amax(3, "s98")
        out.append("    s_sub_u32 s100, s94, s98"); amax(4, "s100")
        for k in range(8):
            out.append(f"    s_sub_u32 s100, s{4+2*k}, s96"); amax(5 + k, "s100")
        out.append("    s_waitcnt vmcnt(0)")
        out.append(l); i += 1; continue
    out.append(l); i += 1
open(sys.argv[2], "w").write("\n".join(out))
```

```python
L = []
def e(s): L.append("    " + s)
def lab(s): L.append(s + ":")
KN = "standalone__deep_cross_fibinet__recsys_kernel"
def header(grid, block, lds, names):
    L.append(f"; @launch grid=({grid},1,1) block=({block},1,1) lds={lds}")
    L.append("; STAMPS: " + " ".join(names))
    L.append('.amdgcn_target "amdgcn-amd-amdhsa--gfx950"')
    L.append(f".text\n.globl {KN}\n.p2align 8\n.type {KN},@function\n{KN}:")
def footer(vgpr=256, accum=256):
    L.append(f'''.section .rodata,"a"
.p2align 6
.amdhsa_kernel {KN}
  .amdhsa_next_free_vgpr {vgpr}
  .amdhsa_next_free_sgpr 102
  .amdhsa_accum_offset {accum}
  .amdhsa_group_segment_fixed_size 0
  .amdhsa_kernarg_size 88
  .amdhsa_user_sgpr_count 2
  .amdhsa_user_sgpr_kernarg_segment_ptr 1
  .amdhsa_system_sgpr_workgroup_id_x 1
.end_amdhsa_kernel''')
SIZES = [4096*26*4, 100000*128, 26*13*2, 13*26*2, 64*64*2, 86528*2, 1664*256*2, 256*2, 4096*2, 256, 1 << 28]
def srd(i): return f"s[{28+4*i}:{31+4*i}]"
def prologue(ngrid):
    e(f"s_cmp_ge_u32 s2, {ngrid}"); e("s_cbranch_scc1 L_end")
    e("s_memtime s[72:73]")
    e("s_memrealtime s[94:95]")
    e("s_load_dwordx16 s[4:19], s[0:1], 0")
    e("s_load_dwordx4 s[20:23], s[0:1], 64")
    e("s_load_dwordx2 s[24:25], s[0:1], 80")
    e("v_lshrrev_b32 v1, 6, v0")
    e("v_and_b32 v2, 63, v0")
    e("v_readfirstlane_b32 s3, v1")
    e("s_waitcnt lgkmcnt(0)")
    for i in range(11):
        b = 28 + 4*i
        e(f"s_mov_b32 s{b}, s{4+2*i}"); e(f"s_and_b32 s{b+1}, s{5+2*i}, 0xffff")
        e(f"s_mov_b32 s{b+2}, {SIZES[i]}"); e(f"s_mov_b32 s{b+3}, 0x00020000")
def stamp(k):
    e(f"s_memtime s[{72+2*k}:{73+2*k}]")
    e("s_waitcnt lgkmcnt(0)")
def flush_stamps(n):
    e("s_memrealtime s[96:97]")
    e("s_waitcnt lgkmcnt(0)")
    e("s_lshl_b32 s98, s2, 4"); e("s_add_u32 s98, s98, s3"); e("s_lshl_b32 s98, s98, 7"); e("s_add_u32 s98, s98, 0x100000")
    e("s_mov_b64 exec, 1")
    e("v_mov_b32 v3, 0")
    for k in range(n):
        e(f"v_mov_b32 v4, s{72+2*k}")
        e(f"buffer_store_dword v4, v3, {srd(10)}, s98 offen offset:{4*k}")
        e("s_nop 2")
    e("v_mov_b32 v4, s94"); e(f"buffer_store_dword v4, v3, {srd(10)}, s98 offen offset:124"); e("s_nop 2")
    e("v_mov_b32 v4, s96"); e(f"buffer_store_dword v4, v3, {srd(10)}, s98 offen offset:120")
    e("s_waitcnt vmcnt(0)")
def write(path):
    open(path, "w").write("\n".join(L) + "\n")
```

```python
import sys
from common import *
mode = sys.argv[1]; nwg = int(sys.argv[2])
header(256, 512, 65536, ["start", "karg", "idx", "issued", "pfdone", "vidx", "done"])
e(f"s_cmp_ge_u32 s2, {nwg}"); e("s_cbranch_scc1 L_end")
e("s_memtime s[72:73]")
e("s_memrealtime s[94:95]")
e("s_load_dwordx4 s[4:7], s[0:1], 0")
e("s_load_dwordx2 s[8:9], s[0:1], 80")
e("v_lshrrev_b32 v1, 6, v0")
e("v_and_b32 v2, 63, v0")
e("v_readfirstlane_b32 s3, v1")
e("s_waitcnt lgkmcnt(0)")
for b, p, sz in ((60, 4, SIZES[0]), (64, 6, SIZES[1]), (68, 8, SIZES[10])):
    e(f"s_mov_b32 s{b}, s{p}"); e(f"s_and_b32 s{b+1}, s{p+1}, 0xffff"); e(f"s_mov_b32 s{b+2}, {sz}"); e(f"s_mov_b32 s{b+3}, 0x00020000")
stamp(1)
e("s_lshl_b32 s92, s2, 3"); e("s_add_u32 s92, s92, s3"); e("s_mul_i32 s92, s92, 208")
if mode.startswith("s"):
    for k in range(13):
        e(f"s_add_u32 s93, s92, {16*k}")
        e(f"s_buffer_load_dwordx4 s[{4+4*k}:{7+4*k}], s[60:63], s93")
    e("s_waitcnt lgkmcnt(0)")
    stamp(2)
    for k in range(52):
        e(f"s_lshl_b32 s{4+k}, s{4+k}, 7")
        e(f"s_buffer_load_dword s99, s[64:67], s{4+k}")
        if mode == "s2":
            e(f"s_add_u32 s{4+k}, s{4+k}, 64")
            e(f"s_buffer_load_dword s100, s[64:67], s{4+k}")
    e("s_memtime s[78:79]")
    e("s_waitcnt lgkmcnt(0)")
    stamp(4)
else:
    e("v_min_u32 v5, 51, v2"); e("v_lshlrev_b32 v5, 2, v5")
    e("buffer_load_dword v32, v5, s[60:63], s92 offen")
    e("s_waitcnt vmcnt(0)")
    stamp(2)
    e("v_lshlrev_b32 v33, 7, v32")
    if mode != "none":
        e("buffer_load_dword v34, v33, s[64:67], 0 offen")
    if mode == "v2":
        e("buffer_load_dword v35, v33, s[64:67], 0 offen offset:64")
    stamp(3)
    e("s_waitcnt vmcnt(0)")
    stamp(4)
e("s_barrier")
e("v_lshrrev_b32 v5, 3, v2"); e("v_lshlrev_b32 v5, 2, v5")
for k in range(7): e(f"buffer_load_dword v{40+k}, v5, s[60:63], s92 offen offset:{32*k}")
e("v_and_b32 v6, 7, v2"); e("v_lshlrev_b32 v6, 4, v6")
e("s_waitcnt vmcnt(0)")
stamp(5)
e("s_lshl_b32 s8, s3, 10")
for f in range(7):
    if f == 6:
        e("s_mov_b32 exec_hi, 0")
    e(f"v_lshl_add_u32 v{64+f}, v{40+f}, 7, v6")
    e(f"s_add_u32 m0, s8, {f * 8192}")
    e("s_nop 0")
    e(f"buffer_load_dwordx4 v{64+f}, s[64:67], 0 offen sc1 lds")
e("s_mov_b64 exec, -1")
e("s_waitcnt vmcnt(0)")
stamp(6)
flush_stamps(7)
lab("L_end")
e("s_endpgm")
footer()
write(sys.argv[3])
```

```python
import sys
from common import *
kind = sys.argv[1]
names = ["start", "karg"] + [f"k{2*(k+1)}" for k in range(8)]
header(256, int(sys.argv[3]) if len(sys.argv) > 3 else 512, 131072, names)
prologue(256)
stamp(1)
for k in range(8):
    if kind == "v8":
        for i in range(256): e(f"v_add3_u32 v{10 + (i % 8)}, v{10 + (i % 8)}, v2, v1")
    elif kind == "s8":
        for i in range(256): e(f"s_mov_b32 s{4 + (i % 8)}, 0x12345678")
    stamp(2 + k)
flush_stamps(10)
lab("L_end")
e("s_endpgm")
footer()
write(sys.argv[2])
```

```python
import re, os

class I:
    __slots__ = ("t", "tag", "pred", "kind", "arg", "n")
    def __init__(s, t, tag=None, pred=None, kind="i", arg=None):
        s.t = t; s.tag = tag; s.pred = pred; s.kind = kind; s.arg = arg; s.n = None

class Em:
    def __init__(s):
        s.L = []
    def e(s, t, tag=None): s.L.append(I(t, tag))
    def lab(s, n): s.L.append(I(n, kind="lab"))
    def cm(s, t): s.L.append(I(t, kind="cm"))
    def br(s, op, target, pred):
        s.L.append(I(f"{op} {target}", pred=pred, kind="br", arg=target))
    def jmp(s, target): s.L.append(I(f"s_branch {target}", pred=lambda c: True, kind="br", arg=target))
    def wvm(s, *tags): s.L.append(I("", kind="wvm", arg=set(tags)))
    def wlg(s, *tags): s.L.append(I("", kind="wlg", arg=set(tags)))
    def bar(s, need=()): s.L.append(I("s_barrier", kind="bar", arg=set(need)))
    def capture(s):
        return _Cap(s)

class _Cap:
    def __init__(s, em): s.em = em
    def __enter__(s):
        s.saved = s.em.L; s.em.L = []; s.lines = s.em.L; return s
    def __exit__(s, *a): s.em.L = s.saved

def interleave(em, *streams):
    its = [list(x.lines if hasattr(x, "lines") else x) for x in streams]
    n = max(len(x) for x in its)
    pos = [0] * len(its)
    for step in range(n):
        for k, x in enumerate(its):
            tgt = (step + 1) * len(x) // n
            while pos[k] < tgt:
                em.L.append(x[pos[k]]); pos[k] += 1

_rv = re.compile(r"^v(\d+)$"); _rvr = re.compile(r"^v\[(\d+):(\d+)\]$")
_rs = re.compile(r"^s(\d+)$"); _rsr = re.compile(r"^s\[(\d+):(\d+)\]$")
def vset(tok):
    tok = tok.strip().lstrip("-")
    m = _rv.match(tok)
    if m: return {int(m.group(1))}
    m = _rvr.match(tok)
    if m: return set(range(int(m.group(1)), int(m.group(2)) + 1))
    return set()
def sset(tok):
    tok = tok.strip()
    if tok == "vcc": return {"vcc"}
    if tok == "m0": return {"m0"}
    if tok in ("exec", "exec_lo", "exec_hi"): return {"exec"}
    m = _rs.match(tok)
    if m: return {int(m.group(1))}
    m = _rsr.match(tok)
    if m: return set(range(int(m.group(1)), int(m.group(2)) + 1))
    return set()

TRANS = ("v_exp_f32", "v_rcp_f32", "v_log_f32", "v_rsq_f32", "v_sqrt_f32")
class P:
    def __init__(s, t):
        t = t.split(";")[0].strip()
        parts = t.split(None, 1)
        s.mn = parts[0]
        rest = parts[1] if len(parts) > 1 else ""
        rest = re.sub(r"\s+op_sel(_hi)?:\[[^\]]*\]", "", rest)
        ops = [x.strip() for x in rest.split(",")]
        s.mods = ""
        if ops and " " in ops[-1]:
            a, b = ops[-1].split(None, 1); ops[-1] = a; s.mods = b
        s.ops = ops
        mn = s.mn
        s.vr = set(); s.vw = set(); s.sr = set(); s.sw = set()
        s.cat = "other"; s.A = s.B = s.C = s.D = set(); s.passes = 0
        s.ws = 1
        if mn == "s_nop": s.ws = int(ops[0]) + 1; s.cat = "nop"
        elif mn.startswith("v_mfma"):
            s.cat = "mfma"; s.D = vset(ops[0]); s.A = vset(ops[1]); s.B = vset(ops[2]); s.C = vset(ops[3])
            s.vw = s.D; s.vr = s.A | s.B | s.C
            s.passes = 8 if "32x32" in mn else 4
        elif mn.startswith("v_"):
            s.cat = "valu"
            if mn.startswith("v_cmp"):
                s.sw = sset(ops[0]); src = ops[1:]
            elif mn.startswith("v_readfirstlane") or mn.startswith("v_readlane"):
                s.sw = sset(ops[0]); src = ops[1:]
            elif mn.startswith("v_add_co") or mn.startswith("v_addc_co"):
                s.vw = vset(ops[0]); s.sw = sset(ops[1]); src = ops[2:]
            elif mn.startswith("v_permlane"):
                s.vw = vset(ops[0]) | vset(ops[1]); src = ops
            else:
                s.vw = vset(ops[0]); src = ops[1:]
                if mn.startswith("v_fmac") or mn.startswith("v_dot2c"): src = ops
            for o in src:
                s.vr |= vset(o); s.sr |= sset(o)
            if mn.startswith("v_dot2"):
                s.C = vset(ops[3]) if len(ops) > 3 else vset(ops[0])
                s.A = vset(ops[1]) | vset(ops[2])
        elif mn.startswith("ds_"):
            s.cat = "ds"
            if mn.startswith("ds_read"):
                s.vw = vset(ops[0]); s.vr = vset(ops[1])
            else:
                for o in ops: s.vr |= vset(o)
            if "addtid" in mn: s.sr |= {"m0"}
        elif mn.startswith("buffer_") or mn.startswith("global_"):
            s.cat = "vmem"
            lds = "lds" in s.mods.split()
            s.lds = lds
            if mn.startswith("buffer_load"):
                if lds:
                    s.vr = vset(ops[0]); rest = ops[1:]; s.sr |= {"m0"}
                else:
                    s.vw = vset(ops[0]); s.vr = vset(ops[1]); rest = ops[2:]
            elif mn.startswith("global_load"):
                s.vw = vset(ops[0]); s.vr = vset(ops[1]); rest = ops[2:]
            elif mn.startswith("buffer_atomic"):
                s.vr = vset(ops[0]) | vset(ops[1]); rest = ops[2:]
                if "sc0" in s.mods.split(): s.vw = vset(ops[0])
            else:
                s.vr = vset(ops[0]) | vset(ops[1]); rest = ops[2:]
            for o in rest: s.sr |= sset(o)
        elif mn.startswith("s_load") or mn.startswith("s_mem") or mn.startswith("s_buffer_load"):
            s.cat = "smem"; s.sw = sset(ops[0])
        elif mn == "s_waitcnt": s.cat = "wait"
        elif mn.startswith("s_"):
            s.cat = "salu"
            if mn.startswith("s_cmp") or mn.startswith("s_bitcmp") or mn.startswith("s_cbranch") or mn in ("s_branch", "s_barrier", "s_endpgm", "s_setprio", "s_sleep"):
                for o in ops: s.sr |= sset(o)
            else:
                s.sw = sset(ops[0])
                for o in ops[1:]: s.sr |= sset(o)
                if "saveexec" in mn: s.sw |= {"exec"}

def need(prod, cons):
    n = 0
    if prod.cat == "valu":
        dot = prod.mn.startswith("v_dot2")
        if dot and (prod.vw & (cons.vr | cons.vw)):
            if cons.mn == prod.mn and not (prod.vw & cons.A): pass
            else: n = max(n, 3)
        if cons.cat == "mfma" and (prod.vw & cons.vr): n = max(n, 2)
        if prod.mn in TRANS and cons.cat in ("valu", "mfma") and cons.mn not in TRANS and (prod.vw & cons.vr): n = max(n, 1)
        if prod.mn in TRANS and cons.mn in TRANS and (prod.vw & cons.vr): n = max(n, 1)
        if cons.mn.startswith("v_permlane") and (prod.vw & cons.vr): n = max(n, 2)
        if (cons.mn.startswith("v_readfirstlane") or cons.mn.startswith("v_readlane")) and (prod.vw & cons.vr): n = max(n, 1)
        if prod.sw:
            if cons.cat == "valu" and (prod.sw & cons.sr): n = max(n, 2)
            if cons.cat == "vmem" and (prod.sw & cons.sr): n = max(n, 5)
            if cons.cat == "salu" and (prod.sw & cons.sr): n = max(n, 1)
    elif prod.cat == "mfma":
        big = 12 if prod.passes == 8 else 8
        if cons.cat == "mfma":
            if prod.D & (cons.A | cons.B): n = max(n, big)
            if prod.D & cons.C:
                if not (prod.D == cons.C and prod.passes == cons.passes): n = max(n, big - 2)
            elif prod.D & cons.D and prod.passes != cons.passes: n = max(n, big)
        elif cons.cat in ("valu", "ds", "vmem"):
            if prod.D & (cons.vr | cons.vw): n = max(n, big)
            if cons.cat == "valu" and (prod.C & cons.vw): n = max(n, 7 if prod.passes == 8 else 3)
    elif prod.cat == "salu":
        if "m0" in prod.sw and cons.cat in ("vmem", "ds") and "m0" in cons.sr: n = max(n, 1)
    elif prod.cat == "vmem":
        if ("x4" in prod.mn or "x3" in prod.mn) and "store" in prod.mn and cons.cat == "valu" and (vset(prod.ops[0]) & cons.vw): n = max(n, 2)
    return n

def path(L, ctx):
    labs = {x.t: i for i, x in enumerate(L) if x.kind == "lab"}
    i = 0; out = []
    while i < len(L):
        x = L[i]
        if x.kind in ("lab", "cm"): i += 1; continue
        out.append(i)
        if x.kind == "br" and x.pred(ctx):
            j = labs[x.arg]
            assert j > i, "backward taken branch in path sim"
            i = j; continue
        if x.kind == "i" and x.t.startswith("s_endpgm"): break
        i += 1
    return out

def parse_wait(t):
    vm = lg = None
    m = re.search(r"vmcnt\((\d+)\)", t)
    if m: vm = int(m.group(1))
    m = re.search(r"lgkmcnt\((\d+)\)", t)
    if m: lg = int(m.group(1))
    return vm, lg

def resolve(L, ctxs, verbose=False):
    cache = {}
    def PP(x):
        if x.t not in cache: cache[x.t] = P(x.t)
        return cache[x.t]
    while True:
        ins = None
        for ctx in ctxs:
            lq = []
            for i in path(L, ctx):
                x = L[i]
                if x.kind == "wlg":
                    idx = [k for k, t in enumerate(lq) if t in x.arg or "*" in x.arg]
                    if idx: del lq[:idx[-1] + 1]
                    continue
                if x.kind != "i": continue
                p = PP(x)
                if p.cat == "wait":
                    vm, lg = parse_wait(x.t)
                    if lg is not None and len(lq) > lg: del lq[:len(lq) - lg]
                elif p.cat in ("ds", "smem"):
                    if len(lq) >= 15:
                        ins = i; break
                    lq.append(x.tag)
            if ins is not None: break
        if ins is None: break
        L.insert(ins, I("s_waitcnt lgkmcnt(%s)" % os.environ.get("CAPN", "9")))
    for x in L:
        if x.kind in ("wvm", "wlg"): x.n = None
    for final in (False, True):
        for ctx in ctxs:
            vq = []; lq = []
            seen = set()
            for i in path(L, ctx):
                x = L[i]
                if x.kind in ("wvm", "wlg"):
                    q = vq if x.kind == "wvm" else lq
                    cap = 63 if x.kind == "wvm" else 15
                    if not final:
                        idx = [k for k, (t, _) in enumerate(q) if t in x.arg or "*" in x.arg]
                        n = min(cap, len(q) - 1 - idx[-1]) if idx else 99
                        if x.kind == "wlg" and any(t == "smem" for t, _ in q) and idx: n = 0
                        x.n = n if x.n is None else min(x.n, n)
                    else:
                        n = x.n
                    if n < 99 and len(q) > n: del q[:len(q) - n]
                    continue
                if x.kind == "bar":
                    if final:
                        for t, _ in vq + lq:
                            assert t not in x.arg, f"barrier needs {t} complete, ctx {ctx}, at {i}"
                    continue
                p = PP(x)
                if p.cat == "wait":
                    vm, lg = parse_wait(x.t)
                    if vm is not None and len(vq) > vm: del vq[:len(vq) - vm]
                    if lg is not None and len(lq) > lg: del lq[:len(lq) - lg]
                    continue
                if final and not os.environ.get("NOCHK"):
                    for q in (vq, lq):
                        for t, d in q:
                            if d & (p.vr | p.vw) and not (p.cat in ("vmem",) and q is vq and not (d & p.vr)) and not (p.cat == "ds" and q is lq and not (d & p.vr)):
                                raise AssertionError(f"use of pending load dest {sorted(d & (p.vr|p.vw))} tag {t} by '{x.t}' ctx {ctx} at {i}")
                if p.cat == "vmem":
                    vq.append((x.tag, set(p.vw)))
                    if final: assert len(vq) <= 63, f"vmcnt overflow ctx {ctx} at {i}"
                elif p.cat == "ds":
                    lq.append((x.tag, set(p.vw)))
                    if final: assert len(lq) <= 15, f"lgkm overflow ({len(lq)}) ctx {ctx} at {i} '{x.t}'"
                elif p.cat == "smem":
                    lq.append(("smem", set()))
    out = []
    for x in L:
        if x.kind in ("wvm", "wlg"):
            if x.n is None or x.n >= 99: continue
            nm = "vmcnt" if x.kind == "wvm" else "lgkmcnt"
            if out and out[-1].kind == "i" and out[-1].t.startswith("s_waitcnt") and nm not in out[-1].t:
                a = out[-1].t
                out[-1] = I(a + f" {nm}({x.n})") if nm == "lgkmcnt" else I(f"s_waitcnt {nm}({x.n}) " + a.split(None, 1)[1])
            else:
                out.append(I(f"s_waitcnt {nm}({x.n})"))
        else: out.append(x)
    L = out
    nfix = 0
    uniq = {}
    for ctx in ctxs: uniq.setdefault(tuple(path(L, ctx)), ctx)
    ctxs = list(uniq.values())
    while True:
        fixes = {}
        for ctx in ctxs:
            pth = path(L, ctx)
            ps = [PP(L[i]) for i in pth]
            for k, c in enumerate(ps):
                if c.cat in ("nop", "wait", "other"): continue
                dist = 0
                for j in range(k - 1, max(-1, k - 14), -1):
                    r = need(ps[j], c)
                    if r > dist:
                        fixes[pth[k]] = max(fixes.get(pth[k], 0), r - dist)
                    dist += ps[j].ws
                    if dist >= 12: break
        if not fixes: break
        sel = []
        for i in sorted(fixes):
            if not sel or i - sel[-1] > 40: sel.append(i)
        for i in reversed(sel):
            if verbose: print("pad", fixes[i], "before", L[i].t)
            L.insert(i, I(f"s_nop {fixes[i]-1}"))
            nfix += 1
    return L, nfix

def render(L):
    o = []
    for x in L:
        if x.kind == "lab": o.append(x.t + ":")
        elif x.kind == "cm": o.append("    ; " + x.t)
        else: o.append("    " + x.t)
    return o
```

```python
import sys, os, struct, math
sys.path.insert(0, os.path.dirname(os.path.abspath(__file__)))
from asmlib import *

STAMPS = int(os.environ.get("STAMPS", "0"))
OPT = os.environ.get("OPT", "").split(",")
STP = eval(os.environ.get("STP", "(0, 1, 4, 12)"))
KN = "standalone__deep_cross_fibinet__recsys_kernel"
EB, WB, FX = 0, 65536, 131072
IDXB = FX; SMB = FX + 8192; CONB = FX + 16384
SW1, SW2, W2B = SMB + 2048, SMB + 3072, SMB + 4096
PIM = EB + 16384
ZB = PIM + 26624; W2F = ZB + 4096
XR = [EB + 49152, WB + 49152, FX, FX + 16384]
EXB = WB + 16384; AB = WB + 32768; RED = FX
LDS_TOTAL = 163840
S_IDX, S_TAB, S_WC, S_W1, S_TMP, S_OUT, S_DBG, S_WS = 28, 32, 36, 40, 44, 48, 52, 56
sO = [28, 29, 30, 31]
sWo, sWd = 60, 61
sW, sRG, sCG, sM0, sKAP, sT0, sT1, sT2 = 86, 87, 88, 89, 90, 91, 92, 93
sLO, sHI, sSGN, sF0N = 94, 95, 96, 97
sCLS, sBND = 27, 3
def srd(b): return f"s[{b}:{b+3}]"
vL = 1
vW1, vSW, aXr, aC, JK, vWC = 2, 3, 4, 5, 6, 7
aE = [8, 9, 10, 11]; aW, aY, aXw0, aXw1 = 12, 13, 14, 15
G = [16, 17, 18, 19]
A1, A2, aI, aZw = 20, 24, 26, 27
aC2 = vWC
ACC = 28; AF = 44; BF = 60; XD = 76; WBI = 100
Y = 116; vC = 142; XF = 144; WFP = 176; WFQ = 208; T = 240
XP = WFP; ZP = WFQ; vW2 = WFQ + 4; zsv = WFQ + 5
TP = [AF, AF + 16, AF + 32, AF + 48]
SP = AF + 64
def vr(b, n): return f"v[{b}:{b+n-1}]"
def v2(b): return f"v[{b}:{b+1}]"
def fb(x): return "0x%08x" % struct.unpack("<I", struct.pack("<f", x))[0]
C0 = -2.0 * math.sqrt(2.0 / math.pi) * math.log2(math.e)
C1 = C0 * 0.044715

em = Em(); e = em.e
kap = lambda c: ((c[0] >> 1) + (c[0] >> 2)) & 1
uid = [0]
def U(p): uid[0] += 1; return f"L_{p}{uid[0]}"
def put(ls):
    for x in ls: em.L.append(x)

SN = ["start"]
def sreg(k): return 98 if k == 0 else 62 + 2*k
def stamp(name):
    if not STAMPS: return
    if name not in SN: SN.append(name)
    k = SN.index(name)
    assert k <= 11
    e(f"s_memtime s[{sreg(k)}:{sreg(k)+1}]")
    e("s_waitcnt lgkmcnt(0)")

def mf32(d, a, b, c=None):
    e(f"v_mfma_f32_32x32x16_bf16 {vr(d,16)}, {vr(a,4)}, {vr(b,4)}, {'0' if c is None else vr(c,16)}")

def vfield(dst, k, tmp):
    e(f"v_mul_i32_i24 v{dst}, s{sSGN}, v{k}")
    e(f"v_add_u32 v{dst}, s{sF0N}, v{dst}")
    for _ in range(2):
        e(f"v_subrev_u32 v{tmp}, 26, v{dst}")
        e(f"v_min_u32 v{dst}, v{dst}, v{tmp}")

def slot_off(k): return ((k >> 1) & 3) * 16384 + (k & 1) * 8192
def dma_E(k, voff, pre=None):
    e(f"s_add_u32 m0, s{sM0}, {EB + slot_off(k)}")
    if pre: pre()
    e(f"buffer_load_dwordx4 v{voff}, {srd(S_TAB)}, 0 offen lds", f"E{k}")
def dma_W(k):
    e(f"s_add_u32 m0, s{sM0}, {WB + slot_off(k)}")
    if k:
        e(f"s_add_u32 s{sWo}, s{sWo}, s{sWd}"); e(f"s_sub_u32 s{sT2}, s{sWo}, {26*32768}"); e(f"s_min_u32 s{sWo}, s{sWo}, s{sT2}")
    e(f"buffer_load_dwordx4 v{vW1}, {srd(S_W1)}, s{sWo} offen lds", f"W{k}")
def idx_fin(reg): e(f"v_lshl_add_u32 v{reg}, v{reg}, 7, v{vSW}")

def wc_setup(t):
    e(f"s_mul_i32 s{sO[0]}, s{sW}, s{sSGN}"); e(f"s_add_u32 s{sO[0]}, s{sO[0]}, s{sF0N}")
    e(f"v_lshrrev_b32 v{t[0]}, 4, v{vL}")
    for _ in range(2):
        e(f"s_sub_u32 s{sT2}, s{sO[0]}, 26"); e(f"s_min_u32 s{sO[0]}, s{sO[0]}, s{sT2}")
    e(f"v_bfe_u32 v{t[1]}, v{vL}, 1, 2")
    e(f"s_mul_i32 s{sO[0]}, s{sO[0]}, 3328")
    e(f"v_lshl_add_u32 v{t[1]}, v{t[0]}, 2, v{t[1]}")
    e(f"s_cmp_eq_u32 s{sSGN}, 1"); e(f"s_cselect_b32 s{sT1}, 8, 18"); e(f"s_mul_i32 s{sT1}, s{sT1}, 3328")
    e(f"v_bfe_u32 v{t[2]}, v{vL}, 3, 1")
    e(f"v_lshl_add_u32 v{t[2]}, v{t[1]}, 1, v{t[2]}")
    for n in (1, 2):
        e(f"s_add_u32 s{sO[n]}, s{sO[n-1]}, s{sT1}"); e(f"s_sub_u32 s{sT2}, s{sO[n]}, {26*3328}"); e(f"s_min_u32 s{sO[n]}, s{sO[n]}, s{sT2}")
    vfield(t[3], t[2], t[4])
    e(f"s_and_b32 s{sT1}, s{sW}, 1"); e(f"s_add_u32 s{sT1}, s{sT1}, 24")
    e(f"s_mul_i32 s{sO[3]}, s{sT1}, s{sSGN}"); e(f"s_add_u32 s{sO[3]}, s{sO[3]}, s{sF0N}")
    e(f"v_xor_b32 v{t[0]}, v{t[0]}, v{vL}")
    for _ in range(2):
        e(f"s_sub_u32 s{sT2}, s{sO[3]}, 26"); e(f"s_min_u32 s{sO[3]}, s{sO[3]}, s{sT2}")
    e(f"v_and_b32 v{t[0]}, 1, v{t[0]}")
    e(f"s_lshl_b32 s{sT1}, s{sCG}, 5")
    e(f"v_lshl_add_u32 v{t[0]}, v{t[0]}, 4, s{sT1}")
    e(f"s_mul_i32 s{sO[3]}, s{sO[3]}, 3328")
    e(f"v_lshl_add_u32 v{t[0]}, v{t[3]}, 7, v{t[0]}")
    e(f"v_add_u32 v{t[1]}, 3, v{t[1]}"); e(f"v_lshrrev_b32 v{t[1]}, 4, v{t[1]}")
    e(f"v_lshl_add_u32 v{vWC}, v{t[1]}, 30, v{t[0]}")

def dma_WC(part, r):
    tag = "WQ" if part else "WP"
    base = (PIM + r * 8192) if not part else (EB + r * 8192 if r < 2 else WB + (r - 2) * 8192)
    l = None
    if r == 3:
        l = U("wc")
        lo = 2 * part
        e(f"s_lshr_b32 s{sT0}, s{sW}, 1"); e(f"s_cmp_lg_u32 s{sT0}, {part}")
        em.br("s_cbranch_scc1", l, lambda c: (c[0] >> 1) != part)
        base -= lo * 1024
    e(f"s_add_u32 m0, s{sM0}, {base}")
    so = sO[r]
    if part:
        e(f"s_add_u32 s{sT0}, s{so}, {26 * 3328}"); so = sT0
    e(f"buffer_load_dwordx4 v{vWC}, {srd(S_WC)}, s{so} offen lds", tag)
    if l: em.lab(l)

def bp_reads(part, R, ks, tg):
    for t in range(7 - ks):
        row = 4*t + 2*ks
        if not part: a, o = aC, PIM + row * 1024
        elif row < 16: a, o = aC, EB + row * 1024
        else: a, o = aC2, (row - 16) * 1024
        e(f"ds_read_b64 {vr(R + 2*t, 2)}, v{a} offset:{o}", f"{tg}{t}")
def bp_perms(dst, R, ks, tg):
    for s in range(3):
        em.wlg(f"{tg}{2*s+1}")
        for ee in range(4):
            e(f"v_perm_b32 v{dst + ee*8 + ks*4 + s}, v{R + 2*(2*s+1) + (ee>>1)}, v{R + 2*(2*s) + (ee>>1)}, s{sHI if ee & 1 else sLO}")
    if ks == 0:
        em.wlg(f"{tg}6")
        for ee in range(4):
            if ee & 1: e(f"v_lshrrev_b32 v{dst + ee*8 + 3}, 16, v{R + 12 + (ee>>1)}")
            else: e(f"v_and_b32 v{dst + ee*8 + 3}, 0xffff, v{R + 12 + (ee>>1)}")

NPRE = 4
PH2 = os.environ.get("PH2", "E0 E1 E2 E3 E4 E5")
PH4 = os.environ.get("PH4", "W2 W3 W4 W5 B E6 E7 T")
ST0 = os.environ.get("ST0", "6 7")
iszw = lambda c: (c[1] == ZCG and c[0] == 7)
def prologue():
    t = [T + i for i in range(16)]
    e("s_cmp_ge_u32 s2, 256")
    em.br("s_cbranch_scc1", "L_end", lambda c: False)
    if STAMPS:
        e("s_memtime s[98:99]"); e("s_memrealtime s[100:101]")
    e(f"v_lshrrev_b32 v{t[2]}, 6, v0")
    e("s_load_dwordx4 s[4:7], s[0:1], 0")
    e("s_load_dwordx4 s[12:15], s[0:1], 40")
    e(f"v_readfirstlane_b32 s{sW}, v{t[2]}")
    e("s_load_dwordx4 s[20:23], s[0:1], 64")
    e("s_load_dwordx2 s[24:25], s[0:1], 80")
    e(f"s_getpc_b64 s[{sT1}:{sT2}]")
    e(f"s_bfe_u32 s{sCG}, s2, 0x20003")
    e(f"s_lshl_b32 s{sT0}, s{sW}, 2"); e(f"s_lshr_b32 s{sT0}, 0x77773244, s{sT0}"); e(f"s_and_b32 s{sT0}, s{sT0}, 15"); e(f"s_lshl_b32 s{sT0}, s{sT0}, 3")
    e(f"s_load_dwordx2 s[{S_TMP}:{S_TMP+1}], s[0:1], s{sT0}")
    e(f"s_mul_i32 s{sT0}, s{sCG}, NLQ*128")
    e(f"v_lshl_add_u32 v{t[0]}, v0, 7, s{sT0}")
    e(f"v_min_u32 v{t[0]}, NLMAX, v{t[0]}")
    e(f"v_mov_b32 v{t[1]}, s{sT2}")
    e(f"v_add_co_u32 v{t[0]}, vcc, s{sT1}, v{t[0]}")
    e(f"v_and_b32 v{vL}, 63, v0")
    e(f"s_lshl_b32 s{sM0}, s{sW}, 10")
    e(f"v_addc_co_u32 v{t[1]}, vcc, 0, v{t[1]}, vcc")
    e("v_cmp_gt_u32 vcc, NLQ, v0")
    e(f"v_and_b32 v{t[4]}, 31, v0")
    e(f"s_and_saveexec_b64 s[{sT1}:{sT2}], vcc")
    em.br("s_cbranch_execz", "L_cpf", lambda c: c[0] > 0)
    e(f"global_load_dword v{JK}, v[{t[0]}:{t[1]}], off", "cpf")
    em.lab("L_cpf")
    e("s_mov_b64 exec, -1")
    F0 = [0, 7, 13, 20]; NEG = [0, 0, 0, 0]
    if "rotpm" in OPT: F0 = [0, 13, 19, 20]; NEG = [0, 1, 1, 0]
    pk = sum((F0[c] | (NEG[c] << 6)) << (8*c) for c in range(4))
    e(f"s_lshl_b32 s{sT0}, s{sCG}, 3"); e(f"s_lshr_b32 s{sT0}, {pk}, s{sT0}")
    e(f"s_bitcmp1_b32 s{sT0}, 6")
    e(f"s_cselect_b32 s{sSGN}, -1, 1"); e(f"s_cselect_b32 s{sWd}, 25, 1"); e(f"s_cselect_b32 s{sT1}, 52, 0")
    e(f"s_and_b32 s{sT0}, s{sT0}, 31")
    e(f"s_add_u32 s{sF0N}, s{sT0}, s{sT1}")
    with em.capture() as c1:
        e(f"s_lshl_b32 s{sWo}, s{sT0}, 15"); e(f"s_lshl_b32 s{sWd}, s{sWd}, 15")
        e(f"s_lshr_b32 s{sT0}, s2, 5"); e(f"s_lshl_b32 s{sT0}, s{sT0}, 3"); e(f"s_and_b32 s{sT1}, s2, 7"); e(f"s_add_u32 s{sRG}, s{sT0}, s{sT1}")
        e(f"s_lshl_b32 s{sT0}, s{sRG}, 3"); e(f"s_add_u32 s{sT0}, s{sT0}, s{sW}"); e(f"s_mul_i32 s{sKAP}, s{sT0}, 832")
        e(f"s_mov_b32 s{S_IDX+2}, {4096*26*4}"); e(f"s_mov_b32 s{S_IDX+3}, 0x00020000")
        e(f"s_add_u32 m0, s{sM0}, {IDXB}")
    with em.capture() as c2:
        vfield(t[5], t[4], t[6])
        e(f"v_lshrrev_b32 v{t[6]}, 5, v{vL}")
        e(f"v_mul_u32_u24 v{t[6]}, 104, v{t[6]}")
        e(f"v_lshl_add_u32 v{t[6]}, v{t[5]}, 2, v{t[6]}")
    interleave(em, c1, c2)
    e("s_waitcnt lgkmcnt(0)")
    def ptr(b, p): e(f"s_mov_b32 s{b}, s{p}"); e(f"s_and_b32 s{b+1}, s{p+1}, 0xffff")
    ptr(S_IDX, 4)
    for j in range(4):
        if j: e(f"s_add_u32 m0, m0, 48")
        e(f"buffer_load_dword v{t[6]}, {srd(S_IDX)}, s{sKAP} offen offset:{208*j} lds", "idx")
    stamp("karg")
    e(f"s_and_b32 s{S_TMP+1}, s{S_TMP+1}, 0xffff")
    e(f"s_mov_b32 s{S_TMP+3}, 0x00020000")
    e(f"s_lshl_b32 s{sT0}, s{sCG}, 7")
    e(f"v_lshlrev_b32 v{t[6]}, 4, v{vL}")
    e(f"s_movk_i32 s{S_TMP+2}, 676"); e(f"s_cmp_ge_u32 s{sW}, 4"); e(f"s_cselect_b32 s{S_TMP+2}, 512, s{S_TMP+2}"); e(f"s_cselect_b32 s{sT0}, s{sT0}, 0")
    e(f"v_and_b32 v{t[8]}, 16, v{t[6]}")
    e(f"s_lshl_b32 s{sT1}, s{sW}, 12"); e(f"s_lshl_b32 s{sT2}, s{sCG}, 5"); e(f"s_add_u32 s{sT1}, s{sT1}, s{sT2}")
    e(f"v_lshrrev_b32 v{t[7]}, 1, v{vL}")
    e(f"s_cmp_lt_u32 s{sW}, 2"); e(f"s_cselect_b32 s{S_TMP+2}, 8192, s{S_TMP+2}"); e(f"s_cselect_b32 s{sT0}, s{sT1}, s{sT0}")
    e(f"s_cselect_b32 s{sT1}, 7, 5")
    e(f"s_add_u32 m0, s{sM0}, {SMB}")
    e(f"v_lshl_add_u32 v{t[7]}, v{t[7]}, s{sT1}, v{t[8]}")
    e(f"buffer_load_dwordx4 v{t[7]}, {srd(S_TMP)}, s{sT0} offen lds", "sm")
    with em.capture() as c1:
        for b, p, sz in ((S_W1, 14, 1664*512), (S_TAB, 6, 12800000), (S_WC, 12, 86528*2)):
            ptr(b, p); e(f"s_mov_b32 s{b+2}, {sz}"); e(f"s_mov_b32 s{b+3}, 0x00020000")
        e(f"s_add_u32 s{sT0}, s{sM0}, {IDXB}")
    with em.capture() as c2:
        e(f"v_and_b32 v{t[5]}, 7, v{vL}")
        e(f"v_lshrrev_b32 v{t[7]}, 2, v{vL}")
        e(f"v_and_b32 v{t[7]}, 4, v{t[7]}")
        e(f"v_xor_b32 v{t[7]}, v{t[7]}, v{t[5]}")
        e(f"v_lshrrev_b32 v{t[8]}, 3, v0")
        e(f"v_lshlrev_b32 v{t[8]}, 9, v{t[8]}")
        e(f"v_lshl_add_u32 v{t[7]}, v{t[7]}, 4, v{t[8]}")
        e(f"v_mov_b32 v{t[8]}, s{sCG}")
        e(f"v_lshl_add_u32 v{vW1}, v{t[8]}, 7, v{t[7]}")
        e(f"v_bfe_u32 v{t[7]}, v0, 4, 3")
        e(f"v_xor_b32 v{t[7]}, v{t[7]}, v{t[5]}")
        e(f"v_lshlrev_b32 v{vSW}, 4, v{t[7]}")
        e(f"v_lshrrev_b32 v{t[4]}, 3, v{vL}")
    interleave(em, c1, c2)
    e(f"v_lshl_add_u32 v{aI}, v{t[4]}, 7, s{sT0}")
    nW0 = int(os.environ.get("NW0", "2"))
    for k in range(nW0): dma_W(k)
    def touch_setup():
        nl = (26 - TW0)
        e(f"v_min_u32 v{t[9]}, {nl-1}, v{vL}")
        e(f"v_mad_u32_u24 v{t[9]}, v{t[2]}, {nl}, v{t[9]}")
        e(f"s_lshr_b32 s{sT0}, s2, 5"); e(f"s_mul_i32 s{sT0}, s{sT0}, {nl*8}")
        e(f"s_add_u32 s{sT1}, s{sF0N}, {TW0}"); e(f"s_lshl_b32 s{sT1}, s{sT1}, 6"); e(f"s_add_u32 s{sT0}, s{sT0}, s{sT1}")
        e(f"v_add_u32 v{t[9]}, s{sT0}, v{t[9]}")
        e(f"v_subrev_u32 v{t[11]}, 1664, v{t[9]}"); e(f"v_min_u32 v{t[9]}, v{t[9]}, v{t[11]}")
        e(f"v_lshlrev_b32 v{t[9]}, 9, v{t[9]}")
        e(f"v_lshl_add_u32 v{t[9]}, v{t[8]}, 7, v{t[9]}")
        e(f"v_min_u32 v{t[10]}, 5, v{vL}")
        e(f"v_mad_u32_u24 v{t[10]}, v{t[2]}, 6, v{t[10]}")
        e(f"v_lshlrev_b32 v{t[10]}, 7, v{t[10]}")
    def touches():
        e(f"buffer_load_dword v{JK}, v{t[9]}, {srd(S_W1)}, 0 offen", "tch")
        e(f"s_lshr_b32 s{sT0}, s2, 3"); e(f"s_mul_i32 s{sT0}, s{sT0}, {43*128}")
        e(f"buffer_load_dword v{JK}, v{t[10]}, {srd(S_WC)}, s{sT0} offen", "tch")
    TW0 = int(os.environ.get("TW0", "8"))
    touch_setup()
    e(f"v_and_b32 v{t[7]}, 5, v0")
    e(f"v_cmp_eq_u32 s[{sT1}:{sT2}], 0, v{t[7]}")
    e(f"v_mov_b32 v{t[7]}, 0x3c80")
    e(f"v_lshlrev_b32 v{t[8]}, 2, v0")
    e(f"v_cndmask_b32 v{t[7]}, 0, v{t[7]}, s[{sT1}:{sT2}]")
    e(f"v_add_u32 v{t[8]}, {CONB}, v{t[8]}")
    e(f"ds_write_b32 v{t[8]}, v{t[7]}", "con")
    with em.capture() as AS: addr_setup()
    na = int(os.environ.get("NA", "40"))
    put(AS.lines[:na])
    em.wvm("idx")
    stamp("idx")
    for q in range(2): e(f"ds_read_b128 {vr(AF + 4*q, 4)}, v{aI} offset:{16*q}", f"I{q}")
    def issue(seq):
        for it in seq.split():
            if it == "T": touches()
            elif it == "B": em.bar()
            elif it[0] == "W": dma_W(int(it[1:]))
            else:
                k = int(it[1:])
                def pre():
                    em.wlg(f"I{k>>2}"); idx_fin(AF + k)
                dma_E(k, AF + k, pre)
    issue(PH2)
    stamp("iss")
    put(AS.lines[na:])
    for b, p, sz in ((S_OUT, 20, 8192), (S_DBG, 22, 256), (S_WS, 24, 1 << 28)):
        ptr(b, p); e(f"s_mov_b32 s{b+2}, {sz}"); e(f"s_mov_b32 s{b+3}, 0x00020000")
    em.wvm("sm")
    em.wlg("*")
    em.bar(["sm", "con"])
    param_build()
    wc_setup([BF + i for i in range(5)])
    l = U("z")
    e(f"s_lshl_b32 s{sT0}, s{sCG}, 3"); e(f"s_add_u32 s{sT0}, s{sT0}, s{sW}")
    e(f"s_cmp_lg_u32 s{sT0}, {ZCG*8+7}")
    em.br("s_cbranch_scc1", l, lambda c: not iszw(c))
    for i in range(4): e(f"v_mov_b32 v{XD+i}, 0")
    e(f"s_lshl_b32 s{sT0}, s{sRG}, 10")
    e(f"buffer_store_dwordx4 {vr(XD,4)}, v{t[6]}, {srd(S_WS)}, s{sT0} offen sc0 sc1", "zero")
    em.lab(l)
    stamp("pre")
    issue(PH4)

def flag_store():
    l = U("z")
    e(f"s_lshl_b32 s{sT0}, s{sCG}, 3"); e(f"s_add_u32 s{sT0}, s{sT0}, s{sW}")
    e(f"s_cmp_lg_u32 s{sT0}, {ZCG*8+7}")
    em.br("s_cbranch_scc1", l, lambda c: not iszw(c))
    em.wvm("zero")
    e(f"v_mov_b32 v{T}, 1"); e(f"v_mov_b32 v{T+1}, 0")
    e(f"s_lshl_b32 s{sT0}, s{sRG}, 2")
    e("s_mov_b64 exec, 1")
    e(f"buffer_store_dword v{T}, v{T+1}, {srd(S_DBG)}, s{sT0} offen sc0 sc1", "flag")
    e("s_mov_b64 exec, -1")
    em.lab(l)

def addr_setup():
    t = [WBI + i for i in range(16)]
    b, h, sw, row = t[0], t[1], t[2], t[3]
    e(f"s_mov_b32 s{sLO}, 0x05040100"); e(f"s_mov_b32 s{sHI}, 0x07060302")
    e(f"s_lshr_b32 s{sT0}, s{sW}, 1"); e(f"s_lshr_b32 s{sT1}, s{sW}, 2"); e(f"s_add_u32 s{sKAP}, s{sT0}, s{sT1}"); e(f"s_and_b32 s{sKAP}, s{sKAP}, 1")
    e(f"v_and_b32 v{b}, 31, v{vL}"); e(f"v_lshrrev_b32 v{h}, 5, v{vL}")
    e(f"v_bfe_u32 v{sw}, v{vL}, 1, 3")
    e(f"s_and_b32 s{sT0}, s{sW}, 1"); e(f"s_lshl_b32 s{sT0}, s{sT0}, 5")
    e(f"v_add_u32 v{row}, s{sT0}, v{b}")
    e(f"s_lshl_b32 s{sT1}, s{sT1}, 13")
    e(f"v_lshl_add_u32 v{t[4]}, v{row}, 7, s{sT1}")
    e(f"v_xor_b32 v{t[5]}, v{h}, v{sw}")
    e(f"v_lshl_add_u32 v{aE[0]}, v{t[5]}, 4, v{t[4]}")
    for ks in range(1, 4): e(f"v_xor_b32 v{aE[ks]}, {ks << 5}, v{aE[0]}")
    e(f"v_bfe_u32 v{t[4]}, v{vL}, 2, 2")
    e(f"v_lshl_add_u32 v{t[5]}, v{h}, 3, v{t[4]}")
    e(f"s_add_u32 s{sT1}, s{sT1}, {WB}")
    e(f"v_lshl_add_u32 v{t[5]}, v{t[5]}, 7, s{sT1}")
    e(f"v_bfe_u32 v{t[6]}, v{vL}, 4, 1")
    e(f"s_lshr_b32 s{sT0}, s{sW}, 2")
    e(f"v_xor_b32 v{t[6]}, s{sT0}, v{t[6]}")
    e(f"v_bfe_u32 v{t[7]}, v{vL}, 1, 1")
    e(f"v_lshl_add_u32 v{t[6]}, v{t[6]}, 1, v{t[7]}")
    e(f"s_and_b32 s{sT0}, s{sW}, 2"); e(f"s_lshl_b32 s{sT0}, s{sT0}, 1")
    e(f"v_or_b32 v{t[6]}, s{sT0}, v{t[6]}")
    e(f"v_lshrrev_b32 v{t[7]}, 1, v{vL}"); e(f"v_and_b32 v{t[7]}, 4, v{t[7]}")
    e(f"v_xor_b32 v{t[6]}, v{t[6]}, v{t[7]}")
    e(f"v_lshl_add_u32 v{t[5]}, v{t[6]}, 4, v{t[5]}")
    e(f"v_and_b32 v{t[7]}, 1, v{vL}")
    e(f"v_lshl_add_u32 v{aW}, v{t[7]}, 3, v{t[5]}")
    e(f"s_lshl_b32 s{sT0}, s{sCG}, 1"); e(f"s_lshr_b32 s{sT1}, s{sW}, 2"); e(f"s_add_u32 s{sT0}, s{sT0}, s{sT1}")
    e(f"v_xor_b32 v{t[4]}, s{sT0}, v{sw}")
    e(f"v_lshlrev_b32 v{t[5]}, 13, v{h}")
    e(f"v_lshl_add_u32 v{t[5]}, v{row}, 7, v{t[5]}")
    e(f"v_lshl_add_u32 v{t[5]}, v{t[4]}, 4, v{t[5]}")
    e(f"s_and_b32 s{sT0}, s{sW}, 2"); e(f"s_lshl_b32 s{sT0}, s{sT0}, 2")
    e(f"v_add_u32 v{aY}, s{sT0}, v{t[5]}")
    e(f"v_bfe_u32 v{t[4]}, v{vL}, 3, 1")
    e(f"v_xor_b32 v{t[4]}, s{sT1}, v{t[4]}")
    e(f"v_lshl_add_u32 v{t[5]}, v{vL}, 5, s{sT0}")
    e(f"v_lshl_add_u32 v{aC}, v{t[4]}, 4, v{t[5]}")
    e(f"s_lshl_b32 s{sT0}, s{sKAP}, 1"); e(f"s_add_u32 s{sT0}, s{sT0}, s{sT1}")
    e(f"s_lshl_b32 s{sT1}, s{sT0}, 10"); e(f"s_add_u32 s{sT1}, s{sT1}, {ZB}")
    e(f"v_lshl_add_u32 v{aZw}, v{row}, 4, s{sT1}")
    e(f"s_lshl_b32 s{sT0}, s{sT0}, 9"); e(f"s_and_b32 s{sT1}, s{sW}, 1"); e(f"s_lshl_b32 s{sT1}, s{sT1}, 11"); e(f"s_add_u32 s{sT0}, s{sT0}, s{sT1}")
    e(f"v_lshl_add_u32 v{t[4]}, v{b}, 4, s{sT0}")
    e(f"v_lshl_add_u32 v{aXw0}, v{h}, 16, v{t[4]}"); e(f"v_add_u32 v{aXw0}, {XR[0]}, v{aXw0}")
    e(f"v_lshl_add_u32 v{aXw1}, v{h}, 14, v{t[4]}"); e(f"v_add_u32 v{aXw1}, {XR[2]}, v{aXw1}")
    e(f"s_bitcmp1_b32 s{sW}, 1")
    e(f"s_cselect_b32 s{sT0}, 65536, 0"); e(f"s_cselect_b32 s{sT2}, 16384, 0")
    e(f"s_add_u32 s{sT0}, s{sT0}, {XR[0]}"); e(f"s_add_u32 s{sT2}, s{sT2}, {XR[2]}")
    e(f"s_bitcmp1_b32 s{sW}, 2"); e(f"s_cselect_b32 s{sT0}, s{sT2}, s{sT0}"); e(f"s_add_u32 s{sT0}, s{sT0}, s{sT1}")
    e(f"v_lshl_add_u32 v{aXr}, v{vL}, 4, s{sT0}")
    e(f"v_mov_b32 v{vC}, {fb(C1)}"); e(f"v_mov_b32 v{vC+1}, {fb(C0)}")
    for i in range(8): e(f"v_mov_b32 v{XP + i*4 + 3}, 0")
    e(f"v_mov_b32 v{ZP + 3}, 0")

def param_build():
    t = [Y + i for i in range(16)]
    u = [XD + 8 + i for i in range(16)]
    e(f"v_lshrrev_b32 v{t[0]}, 5, v{vL}")
    e(f"v_and_b32 v{t[1]}, 15, v{vL}")
    e(f"v_lshlrev_b32 v{t[2]}, 3, v{t[1]}")
    e(f"v_lshl_add_u32 v{t[2]}, v{t[0]}, 8, v{t[2]}")
    e(f"v_and_b32 v{t[0]}, 16, v{vL}")
    e(f"v_lshl_add_u32 v{t[2]}, v{t[0]}, 9, v{t[2]}")
    e(f"v_add_u32 v{t[2]}, {SMB}, v{t[2]}")
    for ks in range(4):
        for uu in range(2):
            e(f"ds_read_b64_tr_b16 {vr(WBI + ks*4 + uu*2, 2)}, v{t[2]} offset:{(16*ks + 4*uu)*32}", "wbi")
    e(f"v_lshlrev_b32 v{t[7]}, 1, v{vL}"); e(f"v_add_u32 v{t[7]}, {W2B}, v{t[7]}")
    e(f"ds_read_u16 v{vW2}, v{t[7]}", "w2")
    e(f"v_lshrrev_b32 v{t[3]}, 4, v{vL}")
    e(f"s_lshr_b32 s{sT0}, s{sW}, 2")
    e(f"v_min_u32 v{t[1]}, 12, v{t[1]}")
    e(f"v_lshl_add_u32 v{t[4]}, v{t[1]}, 1, s{sT0}")
    vfield(t[5], t[4], t[6])
    e(f"v_mul_u32_u24 v{t[6]}, 208, v{t[3]}")
    e(f"v_lshl_add_u32 v{t[5]}, v{t[5]}, 1, v{t[6]}")
    e(f"v_add_u32 v{t[5]}, {SW2}, v{t[5]}")
    for k in range(4): e(f"ds_read_u16 v{u[8+k]}, v{t[5]} offset:{52*k}", "a2")
    vfield(t[5], t[3], t[6])
    e(f"v_lshlrev_b32 v{t[1]}, 1, v{t[1]}")
    e(f"v_mad_u32_u24 v{t[5]}, v{t[5]}, 26, v{t[1]}")
    e(f"s_cmp_eq_u32 s{sSGN}, 1"); e(f"s_cselect_b32 s{sT0}, 4, 22"); e(f"s_mul_i32 s{sT0}, s{sT0}, 26")
    em.wlg("w2")
    e(f"v_lshlrev_b32 v{vW2}, 16, v{vW2}")
    for k in range(7):
        if k:
            e(f"v_add_u32 v{t[5]}, s{sT0}, v{t[5]}"); e(f"v_subrev_u32 v{t[6]}, 676, v{t[5]}"); e(f"v_min_u32 v{t[5]}, v{t[5]}, v{t[6]}")
        e(f"v_add_u32 v{t[9+(k&1)]}, {SW1}, v{t[5]}")
        e(f"ds_read_u16 v{u[k] if k < 6 else A1+3}, v{t[9+(k&1)]}", "a1")
    em.wlg("a2")
    for d in range(2): e(f"v_lshl_or_b32 v{A2+d}, v{u[8+2*d+1]}, 16, v{u[8+2*d]}")
    em.wlg("a1")
    for d in range(3): e(f"v_lshl_or_b32 v{A1+d}, v{u[2*d+1]}, 16, v{u[2*d]}")

def frag_reads(p, ks):
    so = (p & 3) * 16384
    e(f"ds_read_b128 {vr(BF + 4*ks, 4)}, v{aE[ks]} offset:{so}", f"F{ks}")
    for uu in range(2):
        e(f"ds_read_b64_tr_b16 {vr(AF + 4*ks + 2*uu, 2)}, v{aW} offset:{so + (16*ks + 4*uu)*128}", f"F{ks}")

def pack_v(s, single=False, part="zx"):
    if "z" in part:
        if single: e(f"v_cvt_pk_bf16_f32 v{ZP+s}, v{XD+8}, 0")
        else: e(f"v_cvt_pk_bf16_f32 v{ZP+s}, v{zsv}, v{XD+16}")
    if "x" not in part: return
    for i in range(8):
        e(f"v_cvt_pk_bf16_f32 v{XP+4*i+s}, v{XD+i}, {'0' if single else 'v%d' % (XD+8+i)}")

def xdst(p): return XD + 8 * ((p >> 1) & 1)

aEXw, aEXr, aZr, aW2, aAw, aAr, aRD = G[0], G[1], G[2], G[3], aI, vSW, vW1
def tail_addr(part):
    t = [T + 10 + i for i in range(4)]
    if part == 0:
        e(f"s_lshl_b32 s{sT0}, s{sW}, 11"); e(f"s_add_u32 s{sT0}, s{sT0}, {EXB}")
        e(f"v_lshl_add_u32 v{aEXw}, v{vL}, 4, s{sT0}")
        e(f"v_xor_b32 v{aEXr}, 8192, v{aEXw}")
        e(f"v_lshrrev_b32 v{t[0]}, 4, v{vL}")
        e(f"s_and_b32 s{sT1}, s{sW}, 3"); e(f"s_lshl_b32 s{sT1}, s{sT1}, 8")
        e(f"v_lshl_add_u32 v{t[0]}, v{t[0]}, 10, s{sT1}")
        e(f"v_and_b32 v{t[1]}, 15, v{vL}"); e(f"v_lshl_add_u32 v{aZr}, v{t[1]}, 4, v{t[0]}")
        e(f"s_and_b32 s{sT0}, s{sW}, 2"); e(f"s_lshl_b32 s{sT0}, s{sT0}, 6"); e(f"s_lshr_b32 s{sT1}, s{sW}, 2"); e(f"s_lshl_b32 s{sT2}, s{sT1}, 6")
        e(f"s_add_u32 s{sT0}, s{sT0}, s{sT2}"); e(f"s_add_u32 s{sT0}, s{sT0}, {W2F}")
        e(f"v_lshrrev_b32 v{t[0]}, 5, v{vL}"); e(f"v_lshl_add_u32 v{aW2}, v{t[0]}, 4, s{sT0}")
        e(f"s_lshl_b32 s{sT0}, s{sT1}, 12"); e(f"s_add_u32 s{sT0}, s{sT0}, {AB}")
        e(f"v_add_u32 v{aAw}, s{sT0}, v{aZr}")
    else:
        e(f"v_lshrrev_b32 v{t[0]}, 5, v{vL}"); e(f"v_and_b32 v{t[1]}, 31, v{vL}")
        e(f"s_and_b32 s{sT0}, s{sW}, 1"); e(f"s_lshl_b32 s{sT1}, s{sT0}, 9"); e(f"s_add_u32 s{sT1}, s{sT1}, {AB}")
        e(f"v_lshl_add_u32 v{t[2]}, v{t[0]}, 12, s{sT1}")
        e(f"v_lshl_add_u32 v{aAr}, v{t[1]}, 4, v{t[2]}")
        e(f"s_lshl_b32 s{sT0}, s{sT0}, 10"); e(f"s_lshr_b32 s{sT1}, s{sW}, 1"); e(f"s_lshl_b32 s{sT1}, s{sT1}, 3")
        e(f"s_add_u32 s{sT0}, s{sT0}, s{sT1}"); e(f"s_add_u32 s{sT0}, s{sT0}, {RED}")
        e(f"v_lshl_add_u32 v{t[2]}, v{t[0]}, 2, s{sT0}")
        e(f"v_lshl_add_u32 v{aRD}, v{t[1]}, 5, v{t[2]}")
        e(f"v_lshlrev_b32 v{t[3]}, 2, v{vL}"); e(f"v_add_u32 v{t[3]}, {W2F}, v{t[3]}")

def xw(i, n, tag="xw"):
    a = aXw0 if i < 4 else aXw1
    e(f"ds_write_b{32*n} v{a}, {vr(XP + 4*i, n)} offset:{(i & 3)*4096}", tag)

def step(p, K):
    em.cm(f"---- step {p} kap {K}")
    q = p - 1
    duty = q >= 0 and (q & 1) == K
    if p <= 12:
        tags = [f"E{2*p}", f"E{2*p+1}", f"W{2*p}", f"W{2*p+1}"]
        em.wvm(*tags)
        if p == 12: em.wlg("*")
        em.bar(tags)
        if p in STP: stamp(f"b{p}")
    dm = []
    if NPRE <= p + 2 <= 12:
        g = G[2*(p & 1):2*(p & 1) + 2]
        dm = [lambda: dma_E(2*p+4, g[0]), lambda: dma_E(2*p+5, g[1]), lambda: dma_W(2*p+4), lambda: dma_W(2*p+5)]
    nop = lambda: None
    if p == 0:
        dm = [lambda k=int(k): dma_W(k) for k in ST0.split()]
        while len(dm) > 4:
            f1, f2 = dm[-2], dm[-1]; dm = dm[:-2] + [lambda f1=f1, f2=f2: (f1(), f2())]
        dm = [nop] * (4 - len(dm)) + dm
    if p == 11: dm = [lambda: dma_WC(0, 0), nop, nop, lambda: dma_WC(0, 1)]
    if p == 12: dm = [lambda: dma_WC(0, 2), nop, nop, lambda: dma_WC(0, 3)]
    rdi = NPRE <= p + 3 <= 12
    g2 = G[2*((p+1) & 1)]
    pk = None
    if not duty and p >= 2:
        d = p - 2
        pk = (d >> 2) if (d >> 1) & 1 else -1
    if p == 13 and not duty: pack_v(pk, part="z")
    for ks in range(4):
        if q >= 0:
            em.wlg(f"F{ks}")
            if duty: mf32(xdst(q), WBI + 4*ks, BF + 4*ks, None if ks == 0 else xdst(q))
            if not (p == 13 and duty):
                mf32(ACC, AF + 4*ks, BF + 4*ks, None if (q == 0 and ks == 0) else ACC)
        if p <= 12: frag_reads(p, ks)
        if ks == 0:
            if p <= 12: e(f"ds_read_b64 {vr(Y + 2*p, 2)}, v{aY} offset:{(p & 3)*16384}", "cap")
            if rdi: e(f"ds_read_b64 {v2(g2)}, v{aI} offset:{8*(p+3)}", "Ig")
            if pk == -1: e(f"v_mov_b32 v{zsv}, v{XD+8}")
            elif pk is not None and p < 13: pack_v(pk)
        if dm: dm[ks]()
        if p == 11 and ks in (1, 2): tail_addr(ks - 1)
        if p == 12 and K == 0 and ks >= 1:
            for i in ([0, 1, 2], [3, 4, 5], [6, 7])[ks - 1]: xw(i, 3)
        if p == 13 and K == 1 and ks == 0: e(f"ds_write_b128 v{aZw}, {vr(ZP,4)}", "xw")
    if rdi:
        em.wlg("Ig"); idx_fin(g2); idx_fin(g2 + 1)
    if p == 3: flag_store() if K == 0 else None
    if p == 12:
        if K == 1: e(f"ds_write_b32 v{T+13}, v{vW2}", "xw")
        if K == 0:
            l = U("f")
            e(f"s_cmp_lg_u32 s{sW}, 0"); em.br("s_cbranch_scc1", l, lambda c: c[0] != 0)
            e(f"v_mov_b32 v0, 0"); e(f"s_lshl_b32 s{sT0}, s{sRG}, 2")
            e(f"buffer_load_dword v{JK}, v0, {srd(S_DBG)}, s{sT0} offen sc0 sc1", "fl")
            em.lab(l)
    if p == 13:
        if duty:
            for ks in range(4): mf32(ACC, AF + 4*ks, BF + 4*ks, ACC)
            e(f"v_add_u32 v{aXw0}, 12, v{aXw0}"); e(f"v_add_u32 v{aXw1}, 12, v{aXw1}")
            pack_v(3, True, part="z")
            e(f"ds_write_b128 v{aZw}, {vr(ZP,4)}", "xw")
            pack_v(3, True, part="x")
        else:
            pack_v(pk, part="x")
        for qq in range(2): e(f"ds_write_b128 v{aEXw}, {vr(ACC + 8 + 4*qq, 4)} offset:{qq*1024}", "xw")
        em.wlg("*")
        em.bar(["xw"])
        stamp("t1")
        e(f"ds_read_b128 {vr(T,4)}, v{aZr} offset:{ZB}", "zf")
        for q in range(2): e(f"ds_read_b128 {vr(ACC + 8 + 4*q, 4)}, v{aEXr} offset:{q*1024}", "ex")
        for q in range(2): e(f"ds_read_b128 {vr(SP + 4*q, 4)}, v{aW2} offset:{q*32}", "w2")
        dma_WC(1, 0)
        em.wlg("zf")
        e(f"v_mfma_f32_16x16x32_bf16 {vr(T+4,4)}, {vr(A1,4)}, {vr(T,4)}, 0")
        if duty:
            for i in range(0, 8, 2):
                e(f"ds_write2st64_b32 v{aXw0 if i < 4 else aXw1}, v{XP+4*i+3}, v{XP+4*i+7} offset0:{(i&3)*16} offset1:{(i&3)*16+16}", "aw")
        else:
            for i in range(8): xw(i, 4, "aw")

def pk_gelu(x, t, n):
    for i in range(0, n, 2): e(f"v_pk_mul_f32 {v2(t+i)}, {v2(x+i)}, {v2(x+i)}")
    for i in range(0, n, 2): e(f"v_pk_fma_f32 {v2(t+i)}, {v2(t+i)}, {v2(vC)}, {v2(vC)} op_sel:[0,0,1] op_sel_hi:[1,0,1]")
    for i in range(0, n, 2): e(f"v_pk_mul_f32 {v2(t+i)}, {v2(t+i)}, {v2(x+i)}")
    for i in range(n): e(f"v_exp_f32 v{t+i}, v{t+i}")
    for i in range(0, n, 2): e(f"v_pk_add_f32 {v2(t+i)}, {v2(t+i)}, 1.0 op_sel_hi:[1,0]")
    for i in range(n): e(f"v_rcp_f32 v{t+i}, v{t+i}")

def tail():
    t = [T + i for i in range(16)]
    ZF, S1, g = t[0], t[4], t[8]
    EXR = ACC + 8; W2 = SP; vD = A2
    def cap(fn):
        with em.capture() as c: fn()
        return c.lines
    def mix(vl, ms):
        n = len(ms); k = 0
        for i, m in enumerate(ms):
            m()
            k2 = (i + 1) * len(vl) // n
            put(vl[k:k2]); k = k2
    dma_WC(1, 1)
    with em.capture() as D1:
        for i in range(0, 8, 2): e(f"v_pk_add_f32 {v2(ACC+i)}, {v2(ACC+i)}, {v2(EXR+i)}")
        for i in range(0, 8, 2): e(f"v_pk_mul_f32 {v2(EXR+i)}, {v2(ACC+i)}, {v2(ACC+i)}")
        for i in range(0, 8, 2): e(f"v_pk_fma_f32 {v2(EXR+i)}, {v2(EXR+i)}, {v2(vC)}, {v2(vC)} op_sel:[0,0,1] op_sel_hi:[1,0,1]")
        for i in range(0, 8, 2): e(f"v_pk_mul_f32 {v2(EXR+i)}, {v2(EXR+i)}, {v2(ACC+i)}")
        for i in range(0, 8, 2): e(f"v_pk_mul_f32 {v2(W2+i)}, {v2(W2+i)}, {v2(ACC+i)}")
    Dl = D1.lines
    pk_gelu(S1, g, 4)
    for i in (0, 2): e(f"v_pk_mul_f32 {v2(g+i)}, {v2(g+i)}, {v2(S1+i)}")
    for d in range(2): e(f"v_cvt_pk_bf16_f32 v{ZF+d}, v{g+2*d}, v{g+2*d+1}")
    dma_WC(1, 2)
    e(f"v_mfma_f32_16x16x16_bf16 {vr(S1,4)}, {vr(A2,2)}, {vr(ZF,2)}, 0")
    dma_WC(1, 3)
    e(f"s_mov_b32 s{sT1}, {fb(-math.log2(math.e))}"); e(f"s_mov_b32 s{sT2}, {fb(-math.log2(math.e))}")
    em.wlg("ex", "w2")
    put(Dl[:4])
    for i in (0, 2): e(f"v_pk_mul_f32 {v2(g+i)}, {v2(S1+i)}, s[{sT1}:{sT2}]")
    for r in range(4): e(f"v_exp_f32 v{g+r}, v{g+r}")
    for i in (0, 2): e(f"v_pk_add_f32 {v2(g+i)}, {v2(g+i)}, 1.0 op_sel_hi:[1,0]")
    for r in range(4): e(f"v_rcp_f32 v{g+r}, v{g+r}")
    for d in range(2): e(f"v_cvt_pk_bf16_f32 v{ZF+d}, v{g+2*d}, v{g+2*d+1}")
    e(f"v_and_b32 v{ZF+2}, 0xffff, v{ZF}")
    e(f"v_lshrrev_b32 v{ZF+3}, 16, v{ZF}")
    e(f"ds_write_b64 v{aAw}, {v2(ZF+2)} offset:8192", "aw")
    for d in range(2):
        e(f"v_lshlrev_b32 v{g+2*d}, 16, v{ZF+d}")
        e(f"v_and_b32 v{g+2*d+1}, 0xffff0000, v{ZF+d}")
    e(f"ds_write_b128 v{aAw}, {vr(g,4)}", "aw")
    put(Dl[4:])
    em.wvm("WP")
    em.wlg("*")
    em.bar(["aw", "WP"])
    stamp("t2")
    Ra, Rb = WFQ, WFQ + 14
    AV = aE[0]; ALo = ACC
    def xr(ks):
        for ee in range(4): e(f"ds_read_b128 {vr(XF + ee*8 + ks*4, 4)}, v{aXr} offset:{ee*4096 + ks*1024}", f"X{ks}")
    def M(dst, wf, ee, ks): mf32(dst, wf + ee*8 + 4*ks, XF + ee*8 + 4*ks, None if ks == 0 else dst)
    bp_reads(0, Ra, 0, "Ca"); xr(0)
    for i in range(8): e(f"v_exp_f32 v{EXR+i}, v{EXR+i}")
    P0 = cap(lambda: bp_perms(WFP, Ra, 0, "Ca"))
    put(P0[:5]); bp_reads(0, Rb, 1, "Cb"); put(P0[5:15]); xr(1); put(P0[15:])
    em.wlg("X0")
    def fillA():
        for i in range(8): e(f"v_add_f32 v{EXR+i}, 1.0, v{EXR+i}")
        for ee in range(4): e(f"v_mov_b32 v{WFP + ee*8 + 7}, 0")
        for q in range(2):
            e(f"ds_read_b64 {v2(ALo + 2*q)}, v{aAr} offset:{8192 + q*1024}", f"a{q}")
            e(f"ds_read_b128 {vr(AV + 4*q, 4)}, v{aAr} offset:{q*1024}", f"a{q}")
        bp_perms(WFP, Rb, 1, "Cb")
    mix(cap(fillA), [lambda ee=ee: M(TP[ee], WFP, ee, 0) for ee in range(4)])
    em.wlg("X1")
    def fillB():
        for q in range(2, 4):
            e(f"ds_read_b64 {v2(ALo + 2*q)}, v{aAr} offset:{8192 + q*1024}", f"a{q}")
            e(f"ds_read_b128 {vr(AV + 4*q, 4)}, v{aAr} offset:{q*1024}", f"a{q}")
        for i in range(8): e(f"v_rcp_f32 v{EXR+i}, v{EXR+i}")
        for ee in range(4): e(f"v_mov_b32 v{WFQ + ee*8 + 7}, 0")
        e(f"v_add_u32 v{aC2}, {WB}, v{aC}")
        e(f"v_mul_f32 v{vD}, v{W2}, v{EXR}"); e(f"v_mul_f32 v{vD+1}, v{W2+1}, v{EXR+1}")
        for i in range(2, 8): e(f"v_fmac_f32 v{vD+(i&1)}, v{W2+i}, v{EXR+i}")
    mix(cap(fillB), [lambda ee=ee: M(TP[ee], WFP, ee, 1) for ee in range(4)])
    UT = [t[0:13], t[13:16] + [EXR + i for i in range(8)] + [W2, W2 + 1]]
    first = [True]
    def sdots(ee):
        u = UT[ee & 1]
        for s in range(4):
            if first[0]: em.wlg(f"a{s}")
            for ks in range(2):
                if s == 3 and ks == 1: continue
                x = XF + ee*8 + ks*4 + s
                e(f"v_dot2_f32_bf16 v{u[4*s+2*ks]}, v{x}, v{ALo+2*s+ks}, 0")
                if s < 3: e(f"v_dot2_f32_bf16 v{u[4*s+2*ks+1]}, v{x}, v{AV+4*s+2+ks}, 0")
        first[0] = False
    def scvt(ee):
        u = UT[ee & 1]
        for s in range(4):
            for ks in range(2):
                if s == 3 and ks == 1: continue
                e(f"v_cvt_pk_bf16_f32 v{XF + ee*8 + ks*4 + s}, v{u[4*s+2*ks]}, {'v%d' % u[4*s+2*ks+1] if s < 3 else '0'}")
    sdots(0); sdots(1)
    em.wvm("WQ")
    em.bar(["WQ"])
    stamp("t3")
    Rc, Rd = WFP, WFP + 14
    bp_reads(1, Rc, 0, "Cc"); bp_reads(1, Rd, 1, "Cd")
    scvt(0); scvt(1); sdots(2); sdots(3)
    bp_perms(WFQ, Rc, 0, "Cc")
    bp_perms(WFQ, Rd, 1, "Cd")
    TQ = [WFP, WFP + 16, XF, WFQ]
    def fmas(ee, pk):
        if pk:
            for p in range(0, 12, 2): e(f"v_pk_fma_f32 {v2(TP[ee]+p)}, {v2(AV+p)}, {v2(TQ[ee]+p)}, {v2(TP[ee]+p)}")
        else:
            for p in range(12): e(f"v_fmac_f32 v{TP[ee]+p}, v{AV+p}, v{TQ[ee]+p}")
        e(f"v_fmac_f32 v{TP[ee]+12}, v{AV+12}, v{TQ[ee]+12}")
    def cvts(pr):
        for p in range(13): e(f"v_cvt_pk_bf16_f32 v{TP[2*pr]+p}, v{TP[2*pr]+p}, v{TP[2*pr+1]+p}")
    def dots(pr):
        for p in range(13): e(f"v_dot2c_f32_bf16 v{vD+(p&1)}, v{TP[2*pr]+p}, v{Y+2*p+pr}")
    mix(cap(lambda: (scvt(2), scvt(3), final_pre())), [lambda: M(TQ[0], WFQ, 0, 0), lambda: M(TQ[0], WFQ, 0, 1), lambda: M(TQ[1], WFQ, 1, 0), lambda: M(TQ[1], WFQ, 1, 1)])
    mix(cap(lambda: (fmas(0, False), fmas(1, False))),
        [lambda: M(TQ[2], WFQ, 2, 0), lambda: M(TQ[2], WFQ, 2, 1), lambda: M(TQ[3], WFQ, 3, 0), lambda: M(TQ[3], WFQ, 3, 1)])
    cvts(0); dots(0)
    fmas(2, True); fmas(3, True); cvts(1); dots(1)
    e(f"v_add_f32 v{vD}, v{vD}, v{vD+1}")
    e(f"ds_write_b32 v{aRD}, v{vD}", "rw")

def final_pre():
    e(f"v_lshlrev_b32 v{aZw}, 4, v{vL}")
    e(f"v_lshlrev_b32 v{aI}, 5, v{vL}"); e(f"v_add_u32 v{aI}, {RED}, v{aI}")
    e(f"s_and_b32 s{sT0}, s{sCG}, 1"); e(f"s_lshl_b32 s{sT0}, s{sT0}, 4")
    e(f"s_cmp_lt_u32 s{sCG}, 2"); e(f"s_cselect_b32 s{sT1}, -1, 0"); e(f"s_cselect_b32 s{sT2}, 0, -1")
    e(f"s_lshl_b32 s{sKAP}, s{sRG}, 10")
    e(f"s_mov_b32 s{sBND}, 0x40000")

def final():
    t = [T + i for i in range(16)]
    fin = "L_flush" if STAMPS else "L_end"
    em.wlg("*")
    em.bar(["rw"])
    stamp("t4")
    e(f"s_cmp_lg_u32 s{sW}, 0"); em.br("s_cbranch_scc1", fin, lambda c: c[0] != 0)
    for q in range(2): e(f"ds_read_b128 {vr(t[4*q],4)}, v{aI} offset:{16*q}", "rr")
    em.wvm("fl")
    em.lab("L_spin")
    e(f"v_readfirstlane_b32 s{sM0}, v{JK}")
    e(f"s_cmp_eq_u32 s{sM0}, 1")
    em.br("s_cbranch_scc1", "L_go", lambda c: True)
    e("s_sleep 2")
    e(f"s_lshl_b32 s{sM0}, s{sRG}, 2")
    e(f"buffer_load_dword v{JK}, v0, {srd(S_DBG)}, s{sM0} offen sc0 sc1")
    e("s_waitcnt vmcnt(0)")
    e(f"s_sub_u32 s{sBND}, s{sBND}, 1")
    e("s_cbranch_scc0 L_spin")
    em.lab("L_go")
    em.wlg("rr")
    for i in (0, 2): e(f"v_pk_add_f32 {v2(t[i])}, {v2(t[i])}, {v2(t[4+i])}")
    e(f"v_pk_add_f32 {v2(t[0])}, {v2(t[0])}, {v2(t[2])}")
    e(f"v_add_f32 v{t[0]}, v{t[0]}, v{t[1]}")
    e(f"v_bfe_u32 v{t[2]}, v{t[0]}, 1, 16"); e(f"v_lshrrev_b32 v{t[1]}, 16, v{t[0]}")
    e(f"v_or_b32 v{t[2]}, 1, v{t[2]}"); e(f"v_or_b32 v{t[1]}, 1, v{t[1]}")
    e(f"v_lshlrev_b32 v{t[2]}, s{sT0}, v{t[2]}"); e(f"v_lshlrev_b32 v{t[1]}, s{sT0}, v{t[1]}")
    Hh, Ll, Ho, Lo = t[4], t[6], t[8], t[10]
    e(f"v_and_b32 v{Lo}, s{sT1}, v{t[2]}"); e(f"v_and_b32 v{Lo+1}, s{sT2}, v{t[2]}")
    e(f"buffer_atomic_or_x2 {vr(Lo,2)}, v{aZw}, {srd(S_WS)}, s{sKAP} offen offset:8 sc0 sc1", "at")
    e(f"v_and_b32 v{Ho}, s{sT1}, v{t[1]}"); e(f"v_and_b32 v{Ho+1}, s{sT2}, v{t[1]}")
    e(f"buffer_atomic_or_x2 {vr(Ho,2)}, v{aZw}, {srd(S_WS)}, s{sKAP} offen sc0 sc1", "at")
    e(f"v_and_b32 v{Ll}, s{sT1}, v{t[2]}"); e(f"v_and_b32 v{Ll+1}, s{sT2}, v{t[2]}")
    e(f"v_and_b32 v{Hh}, s{sT1}, v{t[1]}"); e(f"v_and_b32 v{Hh+1}, s{sT2}, v{t[1]}")
    e(f"s_mov_b32 s{sT0}, 0x00010001")
    e(f"v_lshlrev_b32 v{aXr}, 1, v{vL}")
    e(f"s_lshl_b32 s{sT1}, s{sRG}, 7")
    em.wvm("at")
    for i in range(2): e(f"v_or_b32 v{Ho+i}, v{Ho+i}, v{Hh+i}")
    e(f"v_and_b32 v{t[0]}, v{Ho}, v{Ho+1}"); e(f"v_and_b32 v{t[0]}, s{sT0}, v{t[0]}")
    e(f"v_cmp_eq_u32 vcc, s{sT0}, v{t[0]}")
    for i in range(2): e(f"v_or_b32 v{Lo+i}, v{Lo+i}, v{Ll+i}")
    e(f"s_and_b64 exec, exec, vcc")
    em.br("s_cbranch_execz", fin, lambda c: False)
    em.lab("L_lchk")
    e(f"v_and_b32 v{t[0]}, v{Lo}, v{Lo+1}"); e(f"v_and_b32 v{t[0]}, s{sT0}, v{t[0]}")
    e(f"v_cmp_ne_u32 vcc, s{sT0}, v{t[0]}")
    for i in range(2):
        e(f"v_lshlrev_b32 v{t[0+2*i]}, 16, v{Ho+i}")
        e(f"v_and_b32 v{t[1+2*i]}, 0xfffe0000, v{Ho+i}")
        e(f"v_and_b32 v{t[0+2*i]}, 0xfffe0000, v{t[0+2*i]}")
    em.br("s_cbranch_vccz", "L_sum", lambda c: True)
    e(f"buffer_load_dwordx2 {vr(Lo,2)}, v{aZw}, {srd(S_WS)}, s{sKAP} offen offset:8 sc0 sc1")
    e("s_waitcnt vmcnt(0)")
    e(f"s_sub_u32 s{sBND}, s{sBND}, 1")
    e("s_cbranch_scc0 L_lchk")
    em.lab("L_sum")
    for i in range(2):
        e(f"v_and_b32 v{t[4+2*i]}, 0xfffe, v{Lo+i}")
        e(f"v_lshrrev_b32 v{t[5+2*i]}, 17, v{Lo+i}")
    for i in range(4): e(f"v_lshl_or_b32 v{t[i]}, v{t[4+i]}, {1 + (i & 1)}, v{t[i]}")
    e(f"v_pk_add_f32 {v2(t[0])}, {v2(t[0])}, {v2(t[2])}")
    e(f"v_add_f32 v{t[0]}, v{t[0]}, v{t[1]}")
    e(f"v_cvt_pk_bf16_f32 v{t[0]}, v{t[0]}, v{t[0]}")
    e(f"buffer_store_short v{t[0]}, v{aXr}, {srd(S_OUT)}, s{sT1} offen")
    if STAMPS:
        em.lab("L_flush")
        e("s_waitcnt vmcnt(0)")
        e("s_memtime s[4:5]"); e("s_memrealtime s[6:7]"); e("s_waitcnt lgkmcnt(0)")
        e(f"s_lshl_b32 s8, s2, 4"); e(f"s_add_u32 s8, s8, s{sW}"); e("s_lshl_b32 s8, s8, 7"); e("s_add_u32 s8, s8, 0x100000")
        e("s_mov_b64 exec, 1"); e("v_mov_b32 v3, 0")
        for k in range(len(SN)):
            e(f"v_mov_b32 v4, s{sreg(k)}")
            e(f"buffer_store_dword v4, v3, {srd(S_WS)}, s8 offen offset:{4*k}"); e("s_nop 2")
        e("v_mov_b32 v4, s4"); e(f"buffer_store_dword v4, v3, {srd(S_WS)}, s8 offen offset:{4*len(SN)}"); e("s_nop 2")
        SN.append("end")
        e("v_mov_b32 v4, s100"); e(f"buffer_store_dword v4, v3, {srd(S_WS)}, s8 offen offset:124"); e("s_nop 2")
        e("v_mov_b32 v4, s6"); e(f"buffer_store_dword v4, v3, {srd(S_WS)}, s8 offen offset:120")
        e("s_waitcnt vmcnt(0)")

ZCG = 2
def main():
    prologue()
    e(f"s_cmp_eq_u32 s{sKAP}, 1"); em.br("s_cbranch_scc1", "L_k1", lambda c: kap(c) == 1)
    for p in range(14): step(p, 0)
    em.jmp("L_tail")
    em.lab("L_k1")
    for p in range(14): step(p, 1)
    em.lab("L_tail")
    tail()
    final()
    em.lab("L_end")
    e("s_endpgm")
    ctxs = [(w, cg) for cg in range(4) for w in range(8)]
    L, nfix = resolve(em.L, ctxs, verbose=bool(os.environ.get("V")))
    out = ["; Kernarg: in0 idx, in1 table, in2 se_w1, in3 se_w2, in4 w_bi, in5 w_cross, in6 w_deep1, in7 w_deep2, out, debug, ws",
           "; generated by gen/g5.py -- 256 WGs (64 row groups x 4 column groups) x 8 waves",
           f"; @launch grid=(256,1,1) block=(512,1,1) lds={LDS_TOTAL}"]
    if STAMPS: out.append("; STAMPS: " + " ".join(SN))
    out += ['.amdgcn_target "amdgcn-amd-amdhsa--gfx950"', ".text", f".globl {KN}", ".p2align 8", f".type {KN},@function", f"{KN}:"]
    body = "\n".join(render(L))
    def sub(nbytes):
        nlq = (nbytes // 128 + 4) // 4
        return body.replace("NLQ*128", str(nlq * 128)).replace("NLQ", str(nlq)).replace("NLMAX", str(nbytes - 64))
    import subprocess
    open("_sz.s", "w").write('.amdgcn_target "amdgcn-amd-amdhsa--gfx950"\n.text\n' + sub(20480) + "\n")
    subprocess.run(["clang", "-x", "assembler", "-target", "amdgcn-amd-amdhsa", "-mcpu=gfx950", "-c", "_sz.s", "-o", "_sz.o"], check=True)
    r = subprocess.run("llvm-readelf -S _sz.o | grep ' .text'", shell=True, capture_output=True, text=True)
    f = r.stdout.split(); nbytes = int(f[f.index("PROGBITS") + 3], 16); print("code bytes", nbytes)
    out.append(sub(nbytes))
    out += ['.section .rodata,"a"', ".p2align 6", f".amdhsa_kernel {KN}", "  .amdhsa_next_free_vgpr 256", "  .amdhsa_next_free_sgpr 102",
            "  .amdhsa_accum_offset 256", "  .amdhsa_group_segment_fixed_size 0", "  .amdhsa_kernarg_size 88", "  .amdhsa_user_sgpr_count 2",
            "  .amdhsa_user_sgpr_kernarg_segment_ptr 1", "  .amdhsa_system_sgpr_workgroup_id_x 1", ".end_amdhsa_kernel"]
    open(sys.argv[1], "w").write("\n".join(out) + "\n")
    print("nops inserted:", nfix, "instr:", sum(1 for x in L if x.kind in ("i", "br", "bar")))
main()
```

```python
import sys, os, struct, math
sys.path.insert(0, os.path.dirname(os.path.abspath(__file__)))
from asmlib import *

STAMPS = int(os.environ.get("STAMPS", "0"))
OPT = os.environ.get("OPT", "").split(",")
STP = eval(os.environ.get("STP", "(0, 1, 4, 12)"))
KN = "standalone__deep_cross_fibinet__recsys_kernel"
EB, WB, FX = 0, 65536, 131072
IDXB = FX; SMB = FX + 8192; CONB = FX + 16384
SW1, SW2, W2B = SMB + 2048, SMB + 3072, SMB + 4096
PIM = EB + 16384
ZB = PIM + 26624; W2F = ZB + 4096
XR = [EB + 49152, WB + 49152, FX, FX + 16384]
EXB = WB + 16384; AB = WB + 32768; RED = FX
LDS_TOTAL = 163840
S_IDX, S_TAB, S_WC, S_W1, S_TMP, S_OUT, S_DBG, S_WS = 28, 32, 36, 40, 44, 48, 52, 56
sO = [28, 29, 30, 31]
sWo, sWd = 60, 61
sW, sRG, sCG, sM0, sKAP, sT0, sT1, sT2 = 86, 87, 88, 89, 90, 91, 92, 93
sLO, sHI, sSGN, sF0N = 94, 95, 96, 97
sCLS, sBND = 27, 3
sU0, sU1, sU2 = 8, 9, 10
def srd(b): return f"s[{b}:{b+3}]"
vL = 1
vW1, vSW, aXr, aC, JK, vWC = 2, 3, 4, 5, 6, 7
aE = [8, 9, 10, 11]; aW, aY, aXw0, aXw1 = 12, 13, 14, 15
G = [16, 17, 18, 19]
A1, A2, aI, aZw = 20, 24, 26, 27
aC2 = vWC
ACC = 28; AF = 44; BF = 60; XD = 76; WBI = 100
Y = 116; vC = 142; XF = 144; WFP = 176; WFQ = 208; T = 240
XP = WFP; ZP = WFQ; vW2 = WFQ + 4; zsv = WFQ + 5
TP = [AF, AF + 16, AF + 32, AF + 48]
SP = AF + 64
def vr(b, n): return f"v[{b}:{b+n-1}]"
def v2(b): return f"v[{b}:{b+1}]"
def fb(x): return "0x%08x" % struct.unpack("<I", struct.pack("<f", x))[0]
C0 = -2.0 * math.sqrt(2.0 / math.pi) * math.log2(math.e)
C1 = C0 * 0.044715

em = Em(); e = em.e
kap = lambda c: ((c[0] >> 1) + (c[0] >> 2)) & 1
uid = [0]
def U(p): uid[0] += 1; return f"L_{p}{uid[0]}"
def put(ls):
    for x in ls: em.L.append(x)

SN = ["start"]
def sreg(k): return 98 if k == 0 else 62 + 2*k
def stamp(name):
    if not STAMPS: return
    if name not in SN: SN.append(name)
    k = SN.index(name)
    assert k <= 11
    e(f"s_memtime s[{sreg(k)}:{sreg(k)+1}]")
    e("s_waitcnt lgkmcnt(0)")

def mf32(d, a, b, c=None):
    e(f"v_mfma_f32_32x32x16_bf16 {vr(d,16)}, {vr(a,4)}, {vr(b,4)}, {'0' if c is None else vr(c,16)}")

def vfield(dst, k, tmp):
    e(f"v_mul_i32_i24 v{dst}, s{sSGN}, v{k}")
    e(f"v_add_u32 v{dst}, s{sF0N}, v{dst}")
    for _ in range(2):
        e(f"v_subrev_u32 v{tmp}, 26, v{dst}")
        e(f"v_min_u32 v{dst}, v{dst}, v{tmp}")

def slot_off(k): return ((k >> 1) & 3) * 16384 + (k & 1) * 8192
def dma_E(k, voff, pre=None):
    e(f"s_add_u32 m0, s{sM0}, {EB + slot_off(k)}")
    if pre: pre()
    fl = os.environ.get("EFL", "") if k < int(os.environ.get("EFN", "26")) else ""
    e(f"buffer_load_dwordx4 v{voff}, {srd(S_TAB)}, 0 offen {fl} lds", f"E{k}")
def dma_W(k):
    e(f"s_add_u32 m0, s{sM0}, {WB + slot_off(k)}")
    if k:
        e(f"s_add_u32 s{sWo}, s{sWo}, s{sWd}"); e(f"s_sub_u32 s{sT2}, s{sWo}, {26*32768}"); e(f"s_min_u32 s{sWo}, s{sWo}, s{sT2}")
    e(f"buffer_load_dwordx4 v{vW1}, {srd(S_W1)}, s{sWo} offen lds", f"W{k}")
def idx_fin(reg): e(f"v_lshl_add_u32 v{reg}, v{reg}, 7, v{vSW}")

def wc_setup(t):
    e(f"s_mul_i32 s{sO[0]}, s{sW}, s{sSGN}"); e(f"s_add_u32 s{sO[0]}, s{sO[0]}, s{sF0N}")
    e(f"v_lshrrev_b32 v{t[0]}, 4, v{vL}")
    for _ in range(2):
        e(f"s_sub_u32 s{sT2}, s{sO[0]}, 26"); e(f"s_min_u32 s{sO[0]}, s{sO[0]}, s{sT2}")
    e(f"v_bfe_u32 v{t[1]}, v{vL}, 1, 2")
    e(f"s_mul_i32 s{sO[0]}, s{sO[0]}, 3328")
    e(f"v_lshl_add_u32 v{t[1]}, v{t[0]}, 2, v{t[1]}")
    e(f"s_cmp_eq_u32 s{sSGN}, 1"); e(f"s_cselect_b32 s{sT1}, 8, 18"); e(f"s_mul_i32 s{sT1}, s{sT1}, 3328")
    e(f"v_bfe_u32 v{t[2]}, v{vL}, 3, 1")
    e(f"v_lshl_add_u32 v{t[2]}, v{t[1]}, 1, v{t[2]}")
    for n in (1, 2):
        e(f"s_add_u32 s{sO[n]}, s{sO[n-1]}, s{sT1}"); e(f"s_sub_u32 s{sT2}, s{sO[n]}, {26*3328}"); e(f"s_min_u32 s{sO[n]}, s{sO[n]}, s{sT2}")
    vfield(t[3], t[2], t[4])
    e(f"s_and_b32 s{sT1}, s{sW}, 1"); e(f"s_add_u32 s{sT1}, s{sT1}, 24")
    e(f"s_mul_i32 s{sO[3]}, s{sT1}, s{sSGN}"); e(f"s_add_u32 s{sO[3]}, s{sO[3]}, s{sF0N}")
    e(f"v_xor_b32 v{t[0]}, v{t[0]}, v{vL}")
    for _ in range(2):
        e(f"s_sub_u32 s{sT2}, s{sO[3]}, 26"); e(f"s_min_u32 s{sO[3]}, s{sO[3]}, s{sT2}")
    e(f"v_and_b32 v{t[0]}, 1, v{t[0]}")
    e(f"s_lshl_b32 s{sT1}, s{sCG}, 5")
    e(f"v_lshl_add_u32 v{t[0]}, v{t[0]}, 4, s{sT1}")
    e(f"s_mul_i32 s{sO[3]}, s{sO[3]}, 3328")
    e(f"v_lshl_add_u32 v{t[0]}, v{t[3]}, 7, v{t[0]}")
    e(f"v_add_u32 v{t[1]}, 3, v{t[1]}"); e(f"v_lshrrev_b32 v{t[1]}, 4, v{t[1]}")
    e(f"v_lshl_add_u32 v{vWC}, v{t[1]}, 30, v{t[0]}")

def dma_WC(part, r):
    tag = "WQ" if part else "WP"
    base = (PIM + r * 8192) if not part else (EB + r * 8192 if r < 2 else WB + (r - 2) * 8192)
    l = None
    if r == 3:
        l = U("wc")
        lo = 2 * part
        e(f"s_lshr_b32 s{sT0}, s{sW}, 1"); e(f"s_cmp_lg_u32 s{sT0}, {part}")
        em.br("s_cbranch_scc1", l, lambda c: (c[0] >> 1) != part)
        base -= lo * 1024
    e(f"s_add_u32 m0, s{sM0}, {base}")
    so = sO[r]
    if part:
        e(f"s_add_u32 s{sT0}, s{so}, {26 * 3328}"); so = sT0
    e(f"buffer_load_dwordx4 v{vWC}, {srd(S_WC)}, s{so} offen lds", tag)
    if l: em.lab(l)

def bp_reads(part, R, ks, tg):
    for t in range(7 - ks):
        row = 4*t + 2*ks
        if not part: a, o = aC, PIM + row * 1024
        elif row < 16: a, o = aC, EB + row * 1024
        else: a, o = aC2, (row - 16) * 1024
        e(f"ds_read_b64 {vr(R + 2*t, 2)}, v{a} offset:{o}", f"{tg}{t}")
def bp_perms(dst, R, ks, tg):
    for s in range(3):
        em.wlg(f"{tg}{2*s+1}")
        for ee in range(4):
            e(f"v_perm_b32 v{dst + ee*8 + ks*4 + s}, v{R + 2*(2*s+1) + (ee>>1)}, v{R + 2*(2*s) + (ee>>1)}, s{sHI if ee & 1 else sLO}")
    if ks == 0:
        em.wlg(f"{tg}6")
        for ee in range(4):
            if ee & 1: e(f"v_lshrrev_b32 v{dst + ee*8 + 3}, 16, v{R + 12 + (ee>>1)}")
            else: e(f"v_and_b32 v{dst + ee*8 + 3}, 0xffff, v{R + 12 + (ee>>1)}")

NPRE = 4
IFL = os.environ.get("IFL", "")
PH2 = os.environ.get("PH2", "E0 E1 W0 W1 E2 E3")
PH4 = os.environ.get("PH4", "W2 W3 E4 E5")
ST0 = os.environ.get("ST0", "W4 W5 E6 E7")
ST1 = os.environ.get("ST1", "W6 W7")
DEF0 = int(os.environ.get("DEF0", "2"))
iszw = lambda c: (c[1] == ZCG and c[0] == 7)
def prologue():
    t = [T + i for i in range(16)]
    e("s_cmp_ge_u32 s2, 256")
    em.br("s_cbranch_scc1", "L_end", lambda c: False)
    if STAMPS:
        e("s_memtime s[98:99]"); e("s_memrealtime s[100:101]")
    e(f"v_lshrrev_b32 v{t[2]}, 6, v0")
    e("s_load_dwordx4 s[4:7], s[0:1], 0")
    e("s_load_dwordx4 s[12:15], s[0:1], 40")
    e(f"v_readfirstlane_b32 s{sW}, v{t[2]}")
    e("s_load_dwordx4 s[20:23], s[0:1], 64")
    e("s_load_dwordx2 s[24:25], s[0:1], 80")
    e(f"s_getpc_b64 s[{sT1}:{sT2}]")
    e(f"s_bfe_u32 s{sCG}, s2, 0x20003")
    e(f"s_lshl_b32 s{sT0}, s{sW}, 2"); e(f"s_lshr_b32 s{sT0}, 0x77773244, s{sT0}"); e(f"s_and_b32 s{sT0}, s{sT0}, 15"); e(f"s_lshl_b32 s{sT0}, s{sT0}, 3")
    e(f"s_load_dwordx2 s[{S_TMP}:{S_TMP+1}], s[0:1], s{sT0}")
    e(f"s_mul_i32 s{sT0}, s{sCG}, NLQ*128")
    e(f"v_lshl_add_u32 v{t[0]}, v0, 7, s{sT0}")
    e(f"v_min_u32 v{t[0]}, NLMAX, v{t[0]}")
    e(f"v_mov_b32 v{t[1]}, s{sT2}")
    e(f"v_add_co_u32 v{t[0]}, vcc, s{sT1}, v{t[0]}")
    e(f"v_and_b32 v{vL}, 63, v0")
    e(f"s_lshl_b32 s{sM0}, s{sW}, 10")
    e(f"v_addc_co_u32 v{t[1]}, vcc, 0, v{t[1]}, vcc")
    e("v_cmp_gt_u32 vcc, NLQ, v0")
    e(f"v_and_b32 v{t[4]}, 31, v0")
    e(f"s_and_saveexec_b64 s[{sT1}:{sT2}], vcc")
    em.br("s_cbranch_execz", "L_cpf", lambda c: c[0] > 0)
    e(f"global_load_dword v{JK}, v[{t[0]}:{t[1]}], off", "cpf")
    em.lab("L_cpf")
    e("s_mov_b64 exec, -1")
    F0 = [0, 7, 13, 20]; NEG = [0, 0, 0, 0]
    if "norot" in OPT: F0 = [0, 0, 0, 0]
    if "rotpm" in OPT: F0 = [0, 13, 19, 20]; NEG = [0, 1, 1, 0]
    pk = sum((F0[c] | (NEG[c] << 6)) << (8*c) for c in range(4))
    e(f"s_lshl_b32 s{sT0}, s{sCG}, 3"); e(f"s_lshr_b32 s{sT0}, {pk}, s{sT0}")
    e(f"s_bitcmp1_b32 s{sT0}, 6")
    e(f"s_cselect_b32 s{sSGN}, -1, 1"); e(f"s_cselect_b32 s{sWd}, 25, 1"); e(f"s_cselect_b32 s{sT1}, 52, 0")
    e(f"s_and_b32 s{sT0}, s{sT0}, 31")
    e(f"s_add_u32 s{sF0N}, s{sT0}, s{sT1}")
    with em.capture() as c1:
        e(f"s_lshl_b32 s{sWo}, s{sT0}, 15"); e(f"s_lshl_b32 s{sWd}, s{sWd}, 15")
        e(f"s_lshr_b32 s{sT0}, s2, 5"); e(f"s_lshl_b32 s{sT0}, s{sT0}, 3"); e(f"s_and_b32 s{sT1}, s2, 7"); e(f"s_add_u32 s{sRG}, s{sT0}, s{sT1}")
        e(f"s_lshl_b32 s{sT0}, s{sRG}, 3"); e(f"s_add_u32 s{sT0}, s{sT0}, s{sW}"); e(f"s_mul_i32 s{sKAP}, s{sT0}, 832")
        e(f"s_mov_b32 s{S_IDX+2}, {4096*26*4}"); e(f"s_mov_b32 s{S_IDX+3}, 0x00020000")
        e(f"s_add_u32 m0, s{sM0}, {IDXB}")
    with em.capture() as c2:
        vfield(t[5], t[4], t[6])
        e(f"v_lshrrev_b32 v{t[6]}, 5, v{vL}")
        e(f"v_mul_u32_u24 v{t[6]}, 104, v{t[6]}")
        e(f"v_lshl_add_u32 v{t[6]}, v{t[5]}, 2, v{t[6]}")
    interleave(em, c1, c2)
    e("s_waitcnt lgkmcnt(0)")
    def ptr(b, p): e(f"s_mov_b32 s{b}, s{p}"); e(f"s_and_b32 s{b+1}, s{p+1}, 0xffff")
    ptr(S_IDX, 4)
    for j in range(4):
        if j: e(f"s_add_u32 m0, m0, 48")
        e(f"buffer_load_dword v{t[6]}, {srd(S_IDX)}, s{sKAP} offen offset:{208*j} {IFL} lds", "idx")
    if "noM" not in OPT:
        for b, p, sz in ((S_W1, 14, 1664*512), (S_WC, 12, 86528*2)):
            ptr(b, p); e(f"s_mov_b32 s{b+2}, {sz}"); e(f"s_mov_b32 s{b+3}, 0x00020000")
        e(f"v_min_u32 v{t[7]}, 3, v{vL}"); e(f"v_lshlrev_b32 v{t[7]}, 7, v{t[7]}")
        e(f"s_mul_i32 s{sT0}, s2, {26*128}"); e(f"s_lshl_b32 s{sT1}, s{sW}, 9"); e(f"s_add_u32 s{sT0}, s{sT0}, s{sT1}")
        e(f"buffer_load_dword v{JK}, v{t[7]}, {srd(S_W1)}, s{sT0} offen", "tch")
        e(f"s_mul_i32 s{sT0}, s2, {6*128}"); e(f"s_lshl_b32 s{sT1}, s{sW}, 7"); e(f"s_add_u32 s{sT0}, s{sT0}, s{sT1}")
        e(f"buffer_load_dword v{JK}, off, {srd(S_WC)}, s{sT0}", "tch")
    MT = int(os.environ.get("MT", "0"))
    def table_touch():
        e(f"v_min_u32 v{t[11]}, {MT-1}, v{vL}"); e(f"v_lshlrev_b32 v{t[11]}, 7, v{t[11]}")
        e(f"s_lshl_b32 s{sT0}, s2, 3"); e(f"s_add_u32 s{sT0}, s{sT0}, s{sW}"); e(f"s_mul_i32 s{sT0}, s{sT0}, {MT*128}")
        e(f"buffer_load_dword v{JK}, v{t[11]}, {srd(S_TAB)}, s{sT0} offen", "tch")
    if MT and "MTearly" in OPT:
        ptr(S_TAB, 6); e(f"s_mov_b32 s{S_TAB+2}, 12800000"); e(f"s_mov_b32 s{S_TAB+3}, 0x00020000")
        table_touch()
    e(f"s_and_b32 s{S_TMP+1}, s{S_TMP+1}, 0xffff")
    e(f"s_mov_b32 s{S_TMP+3}, 0x00020000")
    e(f"s_lshl_b32 s{sT0}, s{sCG}, 7")
    e(f"v_lshlrev_b32 v{t[6]}, 4, v{vL}")
    e(f"s_movk_i32 s{S_TMP+2}, 676"); e(f"s_cmp_ge_u32 s{sW}, 4"); e(f"s_cselect_b32 s{S_TMP+2}, 512, s{S_TMP+2}"); e(f"s_cselect_b32 s{sT0}, s{sT0}, 0")
    e(f"v_and_b32 v{t[8]}, 16, v{t[6]}")
    e(f"s_lshl_b32 s{sT1}, s{sW}, 12"); e(f"s_lshl_b32 s{sT2}, s{sCG}, 5"); e(f"s_add_u32 s{sT1}, s{sT1}, s{sT2}")
    e(f"v_lshrrev_b32 v{t[7]}, 1, v{vL}")
    e(f"s_cmp_lt_u32 s{sW}, 2"); e(f"s_cselect_b32 s{S_TMP+2}, 8192, s{S_TMP+2}"); e(f"s_cselect_b32 s{sT0}, s{sT1}, s{sT0}")
    e(f"s_cselect_b32 s{sT1}, 7, 5")
    e(f"s_add_u32 m0, s{sM0}, {SMB}")
    e(f"v_lshl_add_u32 v{t[7]}, v{t[7]}, s{sT1}, v{t[8]}")
    e(f"buffer_load_dwordx4 v{t[7]}, {srd(S_TMP)}, s{sT0} offen lds", "sm")
    with em.capture() as c1:
        for b, p, sz in ((S_W1, 14, 1664*512), (S_TAB, 6, 12800000), (S_WC, 12, 86528*2)):
            if b != S_TAB and "noM" not in OPT: continue
            ptr(b, p); e(f"s_mov_b32 s{b+2}, {sz}"); e(f"s_mov_b32 s{b+3}, 0x00020000")
        e(f"s_add_u32 s{sT0}, s{sM0}, {IDXB}")
    with em.capture() as c2:
        e(f"v_and_b32 v{t[5]}, 7, v{vL}")
        e(f"v_lshrrev_b32 v{t[7]}, 2, v{vL}")
        e(f"v_and_b32 v{t[7]}, 4, v{t[7]}")
        e(f"v_xor_b32 v{t[7]}, v{t[7]}, v{t[5]}")
        e(f"v_lshrrev_b32 v{t[8]}, 3, v0")
        e(f"v_lshlrev_b32 v{t[8]}, 9, v{t[8]}")
        e(f"v_lshl_add_u32 v{t[7]}, v{t[7]}, 4, v{t[8]}")
        e(f"v_mov_b32 v{t[8]}, s{sCG}")
        e(f"v_lshl_add_u32 v{vW1}, v{t[8]}, 7, v{t[7]}")
        e(f"v_bfe_u32 v{t[7]}, v0, 4, 3")
        e(f"v_xor_b32 v{t[7]}, v{t[7]}, v{t[5]}")
        e(f"v_lshlrev_b32 v{vSW}, 4, v{t[7]}")
        e(f"v_lshrrev_b32 v{t[4]}, 3, v{vL}")
    interleave(em, c1, c2)
    e(f"v_lshl_add_u32 v{aI}, v{t[4]}, 7, s{sT0}")
    if MT and "MTearly" not in OPT: table_touch()
    nW0 = int(os.environ.get("NW0", "0"))
    for k in range(nW0): dma_W(k)
    def touch_setup():
        nl = (26 - TW0)
        e(f"v_min_u32 v{t[9]}, {nl-1}, v{vL}")
        e(f"v_mad_u32_u24 v{t[9]}, v{t[2]}, {nl}, v{t[9]}")
        e(f"s_lshr_b32 s{sT0}, s2, 5"); e(f"s_mul_i32 s{sT0}, s{sT0}, {nl*8}")
        e(f"s_add_u32 s{sT1}, s{sF0N}, {TW0}"); e(f"s_lshl_b32 s{sT1}, s{sT1}, 6"); e(f"s_add_u32 s{sT0}, s{sT0}, s{sT1}")
        e(f"v_add_u32 v{t[9]}, s{sT0}, v{t[9]}")
        e(f"v_subrev_u32 v{t[11]}, 1664, v{t[9]}"); e(f"v_min_u32 v{t[9]}, v{t[9]}, v{t[11]}")
        e(f"v_lshlrev_b32 v{t[9]}, 9, v{t[9]}")
        e(f"v_lshl_add_u32 v{t[9]}, v{t[8]}, 7, v{t[9]}")
        e(f"v_min_u32 v{t[10]}, 5, v{vL}")
        e(f"v_mad_u32_u24 v{t[10]}, v{t[2]}, 6, v{t[10]}")
        e(f"v_lshlrev_b32 v{t[10]}, 7, v{t[10]}")
    TW0 = int(os.environ.get("TW0", "8"))
    if "T" in (PH2 + " " + PH4 + " " + ST0 + " " + ST1 + " " + os.environ.get("PH0", "")).split(): touch_setup()
    issue(os.environ.get("PH0", ""))
    e(f"v_and_b32 v{t[7]}, 5, v0")
    e(f"v_cmp_eq_u32 s[{sT1}:{sT2}], 0, v{t[7]}")
    e(f"v_mov_b32 v{t[7]}, 0x3c80")
    e(f"v_lshlrev_b32 v{t[8]}, 2, v0")
    e(f"v_cndmask_b32 v{t[7]}, 0, v{t[7]}, s[{sT1}:{sT2}]")
    e(f"v_add_u32 v{t[8]}, {CONB}, v{t[8]}")
    e(f"ds_write_b32 v{t[8]}, v{t[7]}", "con")
    addr_setup()
    em.wvm("idx")
    stamp("idx")
    e(f"ds_read_b128 {vr(AF, 4)}, v{aI}", "I0")
    e(f"ds_read_b128 {vr(G[0], 4)}, v{aI} offset:16", "I1")
    issue(PH2)
    stamp("iss")
    em.wvm("sm")
    em.wlg("*")
    for k in range(4, 8):
        if f"E{k}" not in PH2.split(): idx_fin(ereg(k))
    em.bar(["sm", "con"])
    wbi_reads()
    issue(PH4, False)
    stamp("pre")

def ereg(k): return AF + k if k < 4 else G[k - 4]
def touches():
    e(f"buffer_load_dword v{JK}, v{T+9}, {srd(S_W1)}, 0 offen", "tch")
    e(f"s_lshr_b32 s{sT0}, s2, 3"); e(f"s_mul_i32 s{sT0}, s{sT0}, {43*128}")
    e(f"buffer_load_dword v{JK}, v{T+10}, {srd(S_WC)}, s{sT0} offen", "tch")
def issue(seq, fin=True):
    for it in seq.split():
        if it == "T": touches()
        elif it == "B": em.bar()
        elif it[0] == "W": dma_W(int(it[1:]))
        else:
            k = int(it[1:])
            def pre():
                em.wlg(f"I{k>>2}"); idx_fin(ereg(k))
            dma_E(k, ereg(k), pre if fin else None)

def flag_store():
    l = U("z")
    e(f"s_lshl_b32 s{sT0}, s{sCG}, 3"); e(f"s_add_u32 s{sT0}, s{sT0}, s{sW}")
    e(f"s_cmp_lg_u32 s{sT0}, {ZCG*8+7}")
    em.br("s_cbranch_scc1", l, lambda c: not iszw(c))
    em.wvm("zero")
    e(f"v_mov_b32 v{T}, 1"); e(f"v_mov_b32 v{T+1}, 0")
    e(f"s_lshl_b32 s{sT0}, s{sRG}, 2")
    e("s_mov_b64 exec, 1")
    e(f"buffer_store_dword v{T}, v{T+1}, {srd(S_DBG)}, s{sT0} offen sc0 sc1", "flag")
    e("s_mov_b64 exec, -1")
    em.lab(l)

def addr_setup():
    t = [WBI + i for i in range(16)]
    b, h, sw, row = t[0], t[1], t[2], t[3]
    e(f"s_lshr_b32 s{sT0}, s{sW}, 1"); e(f"s_lshr_b32 s{sT1}, s{sW}, 2"); e(f"s_add_u32 s{sKAP}, s{sT0}, s{sT1}"); e(f"s_and_b32 s{sKAP}, s{sKAP}, 1")
    e(f"v_and_b32 v{b}, 31, v{vL}"); e(f"v_lshrrev_b32 v{h}, 5, v{vL}")
    e(f"v_bfe_u32 v{sw}, v{vL}, 1, 3")
    e(f"s_and_b32 s{sT0}, s{sW}, 1"); e(f"s_lshl_b32 s{sT0}, s{sT0}, 5")
    e(f"v_add_u32 v{row}, s{sT0}, v{b}")
    e(f"s_lshl_b32 s{sT1}, s{sT1}, 13")
    e(f"v_lshl_add_u32 v{t[4]}, v{row}, 7, s{sT1}")
    e(f"v_xor_b32 v{t[5]}, v{h}, v{sw}")
    e(f"v_lshl_add_u32 v{aE[0]}, v{t[5]}, 4, v{t[4]}")
    for ks in range(1, 4): e(f"v_xor_b32 v{aE[ks]}, {ks << 5}, v{aE[0]}")
    e(f"v_bfe_u32 v{t[4]}, v{vL}, 2, 2")
    e(f"v_lshl_add_u32 v{t[5]}, v{h}, 3, v{t[4]}")
    e(f"s_add_u32 s{sT1}, s{sT1}, {WB}")
    e(f"v_lshl_add_u32 v{t[5]}, v{t[5]}, 7, s{sT1}")
    e(f"v_bfe_u32 v{t[6]}, v{vL}, 4, 1")
    e(f"s_lshr_b32 s{sT0}, s{sW}, 2")
    e(f"v_xor_b32 v{t[6]}, s{sT0}, v{t[6]}")
    e(f"v_bfe_u32 v{t[7]}, v{vL}, 1, 1")
    e(f"v_lshl_add_u32 v{t[6]}, v{t[6]}, 1, v{t[7]}")
    e(f"s_and_b32 s{sT0}, s{sW}, 2"); e(f"s_lshl_b32 s{sT0}, s{sT0}, 1")
    e(f"v_or_b32 v{t[6]}, s{sT0}, v{t[6]}")
    e(f"v_lshrrev_b32 v{t[7]}, 1, v{vL}"); e(f"v_and_b32 v{t[7]}, 4, v{t[7]}")
    e(f"v_xor_b32 v{t[6]}, v{t[6]}, v{t[7]}")
    e(f"v_lshl_add_u32 v{t[5]}, v{t[6]}, 4, v{t[5]}")
    e(f"v_and_b32 v{t[7]}, 1, v{vL}")
    e(f"v_lshl_add_u32 v{aW}, v{t[7]}, 3, v{t[5]}")
    e(f"s_lshl_b32 s{sT0}, s{sCG}, 1"); e(f"s_lshr_b32 s{sT1}, s{sW}, 2"); e(f"s_add_u32 s{sT0}, s{sT0}, s{sT1}")
    e(f"v_xor_b32 v{t[4]}, s{sT0}, v{sw}")
    e(f"v_lshlrev_b32 v{t[5]}, 13, v{h}")
    e(f"v_lshl_add_u32 v{t[5]}, v{row}, 7, v{t[5]}")
    e(f"v_lshl_add_u32 v{t[5]}, v{t[4]}, 4, v{t[5]}")
    e(f"s_and_b32 s{sT0}, s{sW}, 2"); e(f"s_lshl_b32 s{sT0}, s{sT0}, 2")
    e(f"v_add_u32 v{aY}, s{sT0}, v{t[5]}")
    e(f"v_and_b32 v{t[4]}, 15, v{vL}")
    e(f"v_lshlrev_b32 v{t[4]}, 3, v{t[4]}")
    e(f"v_lshl_add_u32 v{t[4]}, v{h}, 8, v{t[4]}")
    e(f"v_and_b32 v{t[5]}, 16, v{vL}")
    e(f"v_lshl_add_u32 v{t[4]}, v{t[5]}, 9, v{t[4]}")
    e(f"v_add_u32 v{XD}, {SMB}, v{t[4]}")

def wbi_reads():
    for ks in range(4):
        for uu in range(2):
            e(f"ds_read_b64_tr_b16 {vr(WBI + ks*4 + uu*2, 2)}, v{XD} offset:{(16*ks + 4*uu)*32}", "wbi")

def deferred():
    global sT0, sT1, sT2
    sv = (sT0, sT1, sT2); sT0, sT1, sT2 = sU0, sU1, sU2
    ch = []
    def chunk(fn):
        with em.capture() as c: fn()
        ch.append(c.lines)
    t = [XF + i for i in range(16)]
    u = [XF + 16 + i for i in range(16)]
    def ptr(b, p): e(f"s_mov_b32 s{b}, s{p}"); e(f"s_and_b32 s{b+1}, s{p+1}, 0xffff")
    def c_srd():
        for b, p, sz in ((S_OUT, 20, 8192), (S_DBG, 22, 256), (S_WS, 24, 1 << 28)):
            ptr(b, p); e(f"s_mov_b32 s{b+2}, {sz}"); e(f"s_mov_b32 s{b+3}, 0x00020000")
    chunk(c_srd)
    b_, h, row = t[0], t[1], t[3]
    def c_a():
        e(f"s_mov_b32 s{sLO}, 0x05040100"); e(f"s_mov_b32 s{sHI}, 0x07060302")
        e(f"v_and_b32 v{b_}, 31, v{vL}"); e(f"v_lshrrev_b32 v{h}, 5, v{vL}")
        e(f"s_and_b32 s{sT0}, s{sW}, 1"); e(f"s_lshl_b32 s{sT0}, s{sT0}, 5")
        e(f"v_add_u32 v{row}, s{sT0}, v{b_}")
        e(f"s_and_b32 s{sT0}, s{sW}, 2"); e(f"s_lshl_b32 s{sT0}, s{sT0}, 2"); e(f"s_lshr_b32 s{sT1}, s{sW}, 2")
        e(f"v_bfe_u32 v{t[4]}, v{vL}, 3, 1")
    def c_b():
        e(f"v_xor_b32 v{t[4]}, s{sT1}, v{t[4]}")
        e(f"v_lshl_add_u32 v{t[5]}, v{vL}, 5, s{sT0}")
        e(f"v_lshl_add_u32 v{aC}, v{t[4]}, 4, v{t[5]}")
        e(f"s_lshl_b32 s{sT0}, s{sKAP}, 1"); e(f"s_add_u32 s{sT0}, s{sT0}, s{sT1}")
        e(f"s_lshl_b32 s{sT1}, s{sT0}, 10"); e(f"s_add_u32 s{sT1}, s{sT1}, {ZB}")
        e(f"v_lshl_add_u32 v{aZw}, v{row}, 4, s{sT1}")
    def c_c():
        e(f"s_lshl_b32 s{sT0}, s{sT0}, 9"); e(f"s_and_b32 s{sT1}, s{sW}, 1"); e(f"s_lshl_b32 s{sT1}, s{sT1}, 11"); e(f"s_add_u32 s{sT0}, s{sT0}, s{sT1}")
        e(f"v_lshl_add_u32 v{t[4]}, v{b_}, 4, s{sT0}")
        e(f"v_lshl_add_u32 v{aXw0}, v{h}, 16, v{t[4]}"); e(f"v_add_u32 v{aXw0}, {XR[0]}, v{aXw0}")
        e(f"v_lshl_add_u32 v{aXw1}, v{h}, 14, v{t[4]}"); e(f"v_add_u32 v{aXw1}, {XR[2]}, v{aXw1}")
    def c_d():
        e(f"s_bitcmp1_b32 s{sW}, 1")
        e(f"s_cselect_b32 s{sT0}, 65536, 0"); e(f"s_cselect_b32 s{sT2}, 16384, 0")
        e(f"s_add_u32 s{sT0}, s{sT0}, {XR[0]}"); e(f"s_add_u32 s{sT2}, s{sT2}, {XR[2]}")
        e(f"s_bitcmp1_b32 s{sW}, 2"); e(f"s_cselect_b32 s{sT0}, s{sT2}, s{sT0}"); e(f"s_add_u32 s{sT0}, s{sT0}, s{sT1}")
        e(f"v_lshl_add_u32 v{aXr}, v{vL}, 4, s{sT0}")
    def c_e():
        e(f"v_mov_b32 v{vC}, {fb(C1)}"); e(f"v_mov_b32 v{vC+1}, {fb(C0)}")
        for i in range(8): e(f"v_mov_b32 v{XP + i*4 + 3}, 0")
        e(f"v_mov_b32 v{ZP + 3}, 0")
    for f in (c_a, c_b, c_c, c_d, c_e): chunk(f)
    def p_a():
        e(f"v_lshlrev_b32 v{t[7]}, 1, v{vL}"); e(f"v_add_u32 v{t[7]}, {W2B}, v{t[7]}")
        e(f"ds_read_u16 v{vW2}, v{t[7]}", "w2")
        e(f"v_and_b32 v{t[1]}, 15, v{vL}")
        e(f"v_lshrrev_b32 v{t[3]}, 4, v{vL}")
        e(f"s_lshr_b32 s{sT0}, s{sW}, 2")
        e(f"v_min_u32 v{t[1]}, 12, v{t[1]}")
        e(f"v_lshl_add_u32 v{t[4]}, v{t[1]}, 1, s{sT0}")
    def p_b():
        vfield(t[5], t[4], t[6])
        e(f"v_mul_u32_u24 v{t[6]}, 208, v{t[3]}")
        e(f"v_lshl_add_u32 v{t[5]}, v{t[5]}, 1, v{t[6]}")
        e(f"v_add_u32 v{t[5]}, {SW2}, v{t[5]}")
    def p_c():
        for k in range(4): e(f"ds_read_u16 v{u[8+k]}, v{t[5]} offset:{52*k}", "a2")
        vfield(t[2], t[3], t[6])
    def p_d():
        e(f"v_lshlrev_b32 v{t[1]}, 1, v{t[1]}")
        e(f"v_mad_u32_u24 v{t[5]}, v{t[2]}, 26, v{t[1]}")
        e(f"s_cmp_eq_u32 s{sSGN}, 1"); e(f"s_cselect_b32 s{sT0}, 4, 22"); e(f"s_mul_i32 s{sT0}, s{sT0}, 26")
        em.wlg("w2")
        e(f"v_lshlrev_b32 v{vW2}, 16, v{vW2}")
    def p_k(ks):
        for k in ks:
            if k:
                e(f"v_add_u32 v{t[5]}, s{sT0}, v{t[5]}"); e(f"v_subrev_u32 v{t[6]}, 676, v{t[5]}"); e(f"v_min_u32 v{t[5]}, v{t[5]}, v{t[6]}")
            e(f"v_add_u32 v{t[9+(k&1)]}, {SW1}, v{t[5]}")
            e(f"ds_read_u16 v{u[k] if k < 6 else A1+3}, v{t[9+(k&1)]}", "a1")
    for f in (p_a, p_b, p_c, p_d, lambda: p_k([0, 1]), lambda: p_k([2, 3]), lambda: p_k([4, 5]), lambda: p_k([6])): chunk(f)
    with em.capture() as c: wc_setup(t)
    ls = c.lines
    cur = []
    for i, x in enumerate(ls):
        cur.append(x)
        if len(cur) >= 9 and not x.t.startswith("s_cmp"):
            ch.append(cur); cur = []
    if cur: ch.append(cur)
    def p_z():
        em.wlg("a2", "a1")
        for d in range(2): e(f"v_lshl_or_b32 v{A2+d}, v{u[8+2*d+1]}, 16, v{u[8+2*d]}")
        for d in range(3): e(f"v_lshl_or_b32 v{A1+d}, v{u[2*d+1]}, 16, v{u[2*d]}")
    chunk(p_z)
    sT0, sT1, sT2 = sv
    return ch

def zero_store():
    l = U("z")
    e(f"s_lshl_b32 s{sT0}, s{sCG}, 3"); e(f"s_add_u32 s{sT0}, s{sT0}, s{sW}")
    e(f"s_cmp_lg_u32 s{sT0}, {ZCG*8+7}")
    em.br("s_cbranch_scc1", l, lambda c: not iszw(c))
    for i in range(4): e(f"v_mov_b32 v{T+i}, 0")
    e(f"v_lshlrev_b32 v{T+4}, 4, v{vL}")
    e(f"s_lshl_b32 s{sT0}, s{sRG}, 10")
    e(f"buffer_store_dwordx4 {vr(T,4)}, v{T+4}, {srd(S_WS)}, s{sT0} offen sc0 sc1", "zero")
    em.lab(l)

def frag_reads(p, ks):
    so = (p & 3) * 16384
    e(f"ds_read_b128 {vr(BF + 4*ks, 4)}, v{aE[ks]} offset:{so}", f"F{ks}")
    for uu in range(2):
        e(f"ds_read_b64_tr_b16 {vr(AF + 4*ks + 2*uu, 2)}, v{aW} offset:{so + (16*ks + 4*uu)*128}", f"F{ks}")

def pack_v(s, single=False, part="zx"):
    if "z" in part:
        if single: e(f"v_cvt_pk_bf16_f32 v{ZP+s}, v{XD+8}, 0")
        else: e(f"v_cvt_pk_bf16_f32 v{ZP+s}, v{zsv}, v{XD+16}")
    if "x" not in part: return
    for i in range(8):
        e(f"v_cvt_pk_bf16_f32 v{XP+4*i+s}, v{XD+i}, {'0' if single else 'v%d' % (XD+8+i)}")

def xdst(p): return XD + 8 * ((p >> 1) & 1)

aEXw, aEXr, aZr, aW2, aAw, aAr, aRD = G[0], G[1], G[2], G[3], aI, vSW, vW1
def tail_addr(part):
    t = [T + 10 + i for i in range(4)]
    if part == 0:
        e(f"s_lshl_b32 s{sT0}, s{sW}, 11"); e(f"s_add_u32 s{sT0}, s{sT0}, {EXB}")
        e(f"v_lshl_add_u32 v{aEXw}, v{vL}, 4, s{sT0}")
        e(f"v_xor_b32 v{aEXr}, 8192, v{aEXw}")
        e(f"v_lshrrev_b32 v{t[0]}, 4, v{vL}")
        e(f"s_and_b32 s{sT1}, s{sW}, 3"); e(f"s_lshl_b32 s{sT1}, s{sT1}, 8")
        e(f"v_lshl_add_u32 v{t[0]}, v{t[0]}, 10, s{sT1}")
        e(f"v_and_b32 v{t[1]}, 15, v{vL}"); e(f"v_lshl_add_u32 v{aZr}, v{t[1]}, 4, v{t[0]}")
        e(f"s_and_b32 s{sT0}, s{sW}, 2"); e(f"s_lshl_b32 s{sT0}, s{sT0}, 6"); e(f"s_lshr_b32 s{sT1}, s{sW}, 2"); e(f"s_lshl_b32 s{sT2}, s{sT1}, 6")
        e(f"s_add_u32 s{sT0}, s{sT0}, s{sT2}"); e(f"s_add_u32 s{sT0}, s{sT0}, {W2F}")
        e(f"v_lshrrev_b32 v{t[0]}, 5, v{vL}"); e(f"v_lshl_add_u32 v{aW2}, v{t[0]}, 4, s{sT0}")
        e(f"s_lshl_b32 s{sT0}, s{sT1}, 12"); e(f"s_add_u32 s{sT0}, s{sT0}, {AB}")
        e(f"v_add_u32 v{aAw}, s{sT0}, v{aZr}")
    else:
        e(f"v_lshrrev_b32 v{t[0]}, 5, v{vL}"); e(f"v_and_b32 v{t[1]}, 31, v{vL}")
        e(f"s_and_b32 s{sT0}, s{sW}, 1"); e(f"s_lshl_b32 s{sT1}, s{sT0}, 9"); e(f"s_add_u32 s{sT1}, s{sT1}, {AB}")
        e(f"v_lshl_add_u32 v{t[2]}, v{t[0]}, 12, s{sT1}")
        e(f"v_lshl_add_u32 v{aAr}, v{t[1]}, 4, v{t[2]}")
        e(f"s_lshl_b32 s{sT0}, s{sT0}, 10"); e(f"s_lshr_b32 s{sT1}, s{sW}, 1"); e(f"s_lshl_b32 s{sT1}, s{sT1}, 3")
        e(f"s_add_u32 s{sT0}, s{sT0}, s{sT1}"); e(f"s_add_u32 s{sT0}, s{sT0}, {RED}")
        e(f"v_lshl_add_u32 v{t[2]}, v{t[0]}, 2, s{sT0}")
        e(f"v_lshl_add_u32 v{aRD}, v{t[1]}, 5, v{t[2]}")
        e(f"v_lshlrev_b32 v{t[3]}, 2, v{vL}"); e(f"v_add_u32 v{t[3]}, {W2F}, v{t[3]}")

def xw(i, n, tag="xw"):
    a = aXw0 if i < 4 else aXw1
    e(f"ds_write_b{32*n} v{a}, {vr(XP + 4*i, n)} offset:{(i & 3)*4096}", tag)

def step(p, K):
    em.cm(f"---- step {p} kap {K}")
    q = p - 1
    duty = q >= 0 and (q & 1) == K
    if p <= 12:
        tags = [f"E{2*p}", f"E{2*p+1}", f"W{2*p}", f"W{2*p+1}"]
        em.wvm(*tags)
        if p == 12: em.wlg("*")
        em.bar(tags)
        if p in STP: stamp(f"b{p}")
    dm = []
    if NPRE <= p + 2 <= 12:
        g = G[2*(p & 1):2*(p & 1) + 2]
        dm = [lambda: dma_E(2*p+4, g[0]), lambda: dma_E(2*p+5, g[1]), lambda: dma_W(2*p+4), lambda: dma_W(2*p+5)]
    nop = lambda: None
    if p <= 1:
        dm = [lambda k=k: issue(k, False) for k in (ST0, ST1)[p].split()]
        while len(dm) > 4:
            f1, f2 = dm[-2], dm[-1]; dm = dm[:-2] + [lambda f1=f1, f2=f2: (f1(), f2())]
        dm = [nop] * (4 - len(dm)) + dm
    if p == 11: dm = [lambda: dma_WC(0, 0), nop, nop, lambda: dma_WC(0, 1)]
    if p == 12: dm = [lambda: dma_WC(0, 2), nop, nop, lambda: dma_WC(0, 3)]
    rdi = NPRE <= p + 3 <= 12
    g2 = G[2*((p+1) & 1)]
    pk = None
    if not duty and p >= 2:
        d = p - 2
        pk = (d >> 2) if (d >> 1) & 1 else -1
    if p == 13 and not duty: pack_v(pk, part="z")
    for ks in range(4):
        if q >= 0:
            em.wlg(f"F{ks}", "wbi")
            if duty: mf32(xdst(q), WBI + 4*ks, BF + 4*ks, None if ks == 0 else xdst(q))
            if not (p == 13 and duty):
                mf32(ACC, AF + 4*ks, BF + 4*ks, None if (q == 0 and ks == 0) else ACC)
        if p <= 12: frag_reads(p, ks)
        if ks == 0:
            if p <= 12: e(f"ds_read_b64 {vr(Y + 2*p, 2)}, v{aY} offset:{(p & 3)*16384}", "cap")
            if rdi: e(f"ds_read_b64 {v2(g2)}, v{aI} offset:{8*(p+3)}", "Ig")
            if pk == -1: e(f"v_mov_b32 v{zsv}, v{XD+8}")
            elif pk is not None and p < 13: pack_v(pk)
        if dm: dm[ks]()
        if p >= DEF0 and DEF and (ks != 0): put(DEF.pop(0))
        if p == 11 and ks in (1, 2): tail_addr(ks - 1)
        if p == 12 and K == 0 and ks >= 1:
            for i in ([0, 1, 2], [3, 4, 5], [6, 7])[ks - 1]: xw(i, 3)
        if p == 13 and K == 1 and ks == 0: e(f"ds_write_b128 v{aZw}, {vr(ZP,4)}", "xw")
    if rdi:
        em.wlg("Ig"); idx_fin(g2); idx_fin(g2 + 1)
    if p == DEF0 + 1 and K == 0: zero_store()
    if p == DEF0 + 4 and K == 0: flag_store()
    if p == 10: assert not DEF
    if p == 12:
        if K == 1: e(f"ds_write_b32 v{T+13}, v{vW2}", "xw")
        if K == 0:
            l = U("f")
            e(f"s_cmp_lg_u32 s{sW}, 0"); em.br("s_cbranch_scc1", l, lambda c: c[0] != 0)
            e(f"v_mov_b32 v0, 0"); e(f"s_lshl_b32 s{sT0}, s{sRG}, 2")
            e(f"buffer_load_dword v{JK}, v0, {srd(S_DBG)}, s{sT0} offen sc0 sc1", "fl")
            em.lab(l)
    if p == 13:
        if duty:
            for ks in range(4): mf32(ACC, AF + 4*ks, BF + 4*ks, ACC)
            e(f"v_add_u32 v{aXw0}, 12, v{aXw0}"); e(f"v_add_u32 v{aXw1}, 12, v{aXw1}")
            pack_v(3, True, part="z")
            e(f"ds_write_b128 v{aZw}, {vr(ZP,4)}", "xw")
            pack_v(3, True, part="x")
        else:
            pack_v(pk, part="x")
        for qq in range(2): e(f"ds_write_b128 v{aEXw}, {vr(ACC + 8 + 4*qq, 4)} offset:{qq*1024}", "xw")
        em.wlg("*")
        em.bar(["xw"])
        stamp("t1")
        e(f"ds_read_b128 {vr(T,4)}, v{aZr} offset:{ZB}", "zf")
        for q in range(2): e(f"ds_read_b128 {vr(ACC + 8 + 4*q, 4)}, v{aEXr} offset:{q*1024}", "ex")
        for q in range(2): e(f"ds_read_b128 {vr(SP + 4*q, 4)}, v{aW2} offset:{q*32}", "w2")
        dma_WC(1, 0)
        em.wlg("zf")
        e(f"v_mfma_f32_16x16x32_bf16 {vr(T+4,4)}, {vr(A1,4)}, {vr(T,4)}, 0")
        if duty:
            for i in range(0, 8, 2):
                e(f"ds_write2st64_b32 v{aXw0 if i < 4 else aXw1}, v{XP+4*i+3}, v{XP+4*i+7} offset0:{(i&3)*16} offset1:{(i&3)*16+16}", "aw")
        else:
            for i in range(8): xw(i, 4, "aw")

def pk_gelu(x, t, n):
    for i in range(0, n, 2): e(f"v_pk_mul_f32 {v2(t+i)}, {v2(x+i)}, {v2(x+i)}")
    for i in range(0, n, 2): e(f"v_pk_fma_f32 {v2(t+i)}, {v2(t+i)}, {v2(vC)}, {v2(vC)} op_sel:[0,0,1] op_sel_hi:[1,0,1]")
    for i in range(0, n, 2): e(f"v_pk_mul_f32 {v2(t+i)}, {v2(t+i)}, {v2(x+i)}")
    for i in range(n): e(f"v_exp_f32 v{t+i}, v{t+i}")
    for i in range(0, n, 2): e(f"v_pk_add_f32 {v2(t+i)}, {v2(t+i)}, 1.0 op_sel_hi:[1,0]")
    for i in range(n): e(f"v_rcp_f32 v{t+i}, v{t+i}")

def tail():
    t = [T + i for i in range(16)]
    ZF, S1, g = t[0], t[4], t[8]
    EXR = ACC + 8; W2 = SP; vD = A2
    def cap(fn):
        with em.capture() as c: fn()
        return c.lines
    def mix(vl, ms):
        n = len(ms); k = 0
        for i, m in enumerate(ms):
            m()
            k2 = (i + 1) * len(vl) // n
            put(vl[k:k2]); k = k2
    dma_WC(1, 1)
    with em.capture() as D1:
        for i in range(0, 8, 2): e(f"v_pk_add_f32 {v2(ACC+i)}, {v2(ACC+i)}, {v2(EXR+i)}")
        for i in range(0, 8, 2): e(f"v_pk_mul_f32 {v2(EXR+i)}, {v2(ACC+i)}, {v2(ACC+i)}")
        for i in range(0, 8, 2): e(f"v_pk_fma_f32 {v2(EXR+i)}, {v2(EXR+i)}, {v2(vC)}, {v2(vC)} op_sel:[0,0,1] op_sel_hi:[1,0,1]")
        for i in range(0, 8, 2): e(f"v_pk_mul_f32 {v2(EXR+i)}, {v2(EXR+i)}, {v2(ACC+i)}")
        for i in range(0, 8, 2): e(f"v_pk_mul_f32 {v2(W2+i)}, {v2(W2+i)}, {v2(ACC+i)}")
    Dl = D1.lines
    pk_gelu(S1, g, 4)
    for i in (0, 2): e(f"v_pk_mul_f32 {v2(g+i)}, {v2(g+i)}, {v2(S1+i)}")
    for d in range(2): e(f"v_cvt_pk_bf16_f32 v{ZF+d}, v{g+2*d}, v{g+2*d+1}")
    dma_WC(1, 2)
    e(f"v_mfma_f32_16x16x16_bf16 {vr(S1,4)}, {vr(A2,2)}, {vr(ZF,2)}, 0")
    dma_WC(1, 3)
    e(f"s_mov_b32 s{sT1}, {fb(-math.log2(math.e))}"); e(f"s_mov_b32 s{sT2}, {fb(-math.log2(math.e))}")
    em.wlg("ex", "w2")
    put(Dl[:4])
    for i in (0, 2): e(f"v_pk_mul_f32 {v2(g+i)}, {v2(S1+i)}, s[{sT1}:{sT2}]")
    for r in range(4): e(f"v_exp_f32 v{g+r}, v{g+r}")
    for i in (0, 2): e(f"v_pk_add_f32 {v2(g+i)}, {v2(g+i)}, 1.0 op_sel_hi:[1,0]")
    for r in range(4): e(f"v_rcp_f32 v{g+r}, v{g+r}")
    for d in range(2): e(f"v_cvt_pk_bf16_f32 v{ZF+d}, v{g+2*d}, v{g+2*d+1}")
    e(f"v_and_b32 v{ZF+2}, 0xffff, v{ZF}")
    e(f"v_lshrrev_b32 v{ZF+3}, 16, v{ZF}")
    e(f"ds_write_b64 v{aAw}, {v2(ZF+2)} offset:8192", "aw")
    for d in range(2):
        e(f"v_lshlrev_b32 v{g+2*d}, 16, v{ZF+d}")
        e(f"v_and_b32 v{g+2*d+1}, 0xffff0000, v{ZF+d}")
    e(f"ds_write_b128 v{aAw}, {vr(g,4)}", "aw")
    put(Dl[4:])
    em.wvm("WP")
    em.wlg("*")
    em.bar(["aw", "WP"])
    stamp("t2")
    Ra, Rb = WFQ, WFQ + 14
    AV = aE[0]; ALo = ACC
    def xr(ks):
        for ee in range(4): e(f"ds_read_b128 {vr(XF + ee*8 + ks*4, 4)}, v{aXr} offset:{ee*4096 + ks*1024}", f"X{ks}")
    def M(dst, wf, ee, ks): mf32(dst, wf + ee*8 + 4*ks, XF + ee*8 + 4*ks, None if ks == 0 else dst)
    bp_reads(0, Ra, 0, "Ca"); xr(0)
    for i in range(8): e(f"v_exp_f32 v{EXR+i}, v{EXR+i}")
    P0 = cap(lambda: bp_perms(WFP, Ra, 0, "Ca"))
    put(P0[:5]); bp_reads(0, Rb, 1, "Cb"); put(P0[5:15]); xr(1); put(P0[15:])
    em.wlg("X0")
    def fillA():
        for i in range(8): e(f"v_add_f32 v{EXR+i}, 1.0, v{EXR+i}")
        for ee in range(4): e(f"v_mov_b32 v{WFP + ee*8 + 7}, 0")
        for q in range(2):
            e(f"ds_read_b64 {v2(ALo + 2*q)}, v{aAr} offset:{8192 + q*1024}", f"a{q}")
            e(f"ds_read_b128 {vr(AV + 4*q, 4)}, v{aAr} offset:{q*1024}", f"a{q}")
        bp_perms(WFP, Rb, 1, "Cb")
    mix(cap(fillA), [lambda ee=ee: M(TP[ee], WFP, ee, 0) for ee in range(4)])
    em.wlg("X1")
    def fillB():
        for q in range(2, 4):
            e(f"ds_read_b64 {v2(ALo + 2*q)}, v{aAr} offset:{8192 + q*1024}", f"a{q}")
            e(f"ds_read_b128 {vr(AV + 4*q, 4)}, v{aAr} offset:{q*1024}", f"a{q}")
        for i in range(8): e(f"v_rcp_f32 v{EXR+i}, v{EXR+i}")
        for ee in range(4): e(f"v_mov_b32 v{WFQ + ee*8 + 7}, 0")
        e(f"v_add_u32 v{aC2}, {WB}, v{aC}")
        e(f"v_mul_f32 v{vD}, v{W2}, v{EXR}"); e(f"v_mul_f32 v{vD+1}, v{W2+1}, v{EXR+1}")
        for i in range(2, 8): e(f"v_fmac_f32 v{vD+(i&1)}, v{W2+i}, v{EXR+i}")
    mix(cap(fillB), [lambda ee=ee: M(TP[ee], WFP, ee, 1) for ee in range(4)])
    UT = [t[0:13], t[13:16] + [EXR + i for i in range(8)] + [W2, W2 + 1]]
    first = [True]
    def sdots(ee):
        u = UT[ee & 1]
        for s in range(4):
            if first[0]: em.wlg(f"a{s}")
            for ks in range(2):
                if s == 3 and ks == 1: continue
                x = XF + ee*8 + ks*4 + s
                e(f"v_dot2_f32_bf16 v{u[4*s+2*ks]}, v{x}, v{ALo+2*s+ks}, 0")
                if s < 3: e(f"v_dot2_f32_bf16 v{u[4*s+2*ks+1]}, v{x}, v{AV+4*s+2+ks}, 0")
        first[0] = False
    def scvt(ee):
        u = UT[ee & 1]
        for s in range(4):
            for ks in range(2):
                if s == 3 and ks == 1: continue
                e(f"v_cvt_pk_bf16_f32 v{XF + ee*8 + ks*4 + s}, v{u[4*s+2*ks]}, {'v%d' % u[4*s+2*ks+1] if s < 3 else '0'}")
    sdots(0); sdots(1)
    em.wvm("WQ")
    em.bar(["WQ"])
    stamp("t3")
    Rc, Rd = WFP, WFP + 14
    bp_reads(1, Rc, 0, "Cc"); bp_reads(1, Rd, 1, "Cd")
    scvt(0); scvt(1); sdots(2); sdots(3)
    bp_perms(WFQ, Rc, 0, "Cc")
    bp_perms(WFQ, Rd, 1, "Cd")
    TQ = [WFP, WFP + 16, XF, WFQ]
    def fmas(ee, pk):
        if pk:
            for p in range(0, 12, 2): e(f"v_pk_fma_f32 {v2(TP[ee]+p)}, {v2(AV+p)}, {v2(TQ[ee]+p)}, {v2(TP[ee]+p)}")
        else:
            for p in range(12): e(f"v_fmac_f32 v{TP[ee]+p}, v{AV+p}, v{TQ[ee]+p}")
        e(f"v_fmac_f32 v{TP[ee]+12}, v{AV+12}, v{TQ[ee]+12}")
    def cvts(pr):
        for p in range(13): e(f"v_cvt_pk_bf16_f32 v{TP[2*pr]+p}, v{TP[2*pr]+p}, v{TP[2*pr+1]+p}")
    def dots(pr):
        for p in range(13): e(f"v_dot2c_f32_bf16 v{vD+(p&1)}, v{TP[2*pr]+p}, v{Y+2*p+pr}")
    mix(cap(lambda: (scvt(2), scvt(3), final_pre())), [lambda: M(TQ[0], WFQ, 0, 0), lambda: M(TQ[0], WFQ, 0, 1), lambda: M(TQ[1], WFQ, 1, 0), lambda: M(TQ[1], WFQ, 1, 1)])
    mix(cap(lambda: (fmas(0, False), fmas(1, False))),
        [lambda: M(TQ[2], WFQ, 2, 0), lambda: M(TQ[2], WFQ, 2, 1), lambda: M(TQ[3], WFQ, 3, 0), lambda: M(TQ[3], WFQ, 3, 1)])
    cvts(0); dots(0)
    fmas(2, True); fmas(3, True); cvts(1); dots(1)
    e(f"v_add_f32 v{vD}, v{vD}, v{vD+1}")
    e(f"ds_write_b32 v{aRD}, v{vD}", "rw")

def final_pre():
    e(f"v_lshlrev_b32 v{aZw}, 4, v{vL}")
    e(f"v_lshlrev_b32 v{aI}, 5, v{vL}"); e(f"v_add_u32 v{aI}, {RED}, v{aI}")
    e(f"s_and_b32 s{sT0}, s{sCG}, 1"); e(f"s_lshl_b32 s{sT0}, s{sT0}, 4")
    e(f"s_cmp_lt_u32 s{sCG}, 2"); e(f"s_cselect_b32 s{sT1}, -1, 0"); e(f"s_cselect_b32 s{sT2}, 0, -1")
    e(f"s_lshl_b32 s{sKAP}, s{sRG}, 10")
    e(f"s_mov_b32 s{sBND}, 0x40000")

def final():
    t = [T + i for i in range(16)]
    fin = "L_flush" if STAMPS else "L_end"
    em.wlg("*")
    em.bar(["rw"])
    stamp("t4")
    e(f"s_cmp_lg_u32 s{sW}, 0"); em.br("s_cbranch_scc1", fin, lambda c: c[0] != 0)
    for q in range(2): e(f"ds_read_b128 {vr(t[4*q],4)}, v{aI} offset:{16*q}", "rr")
    em.wvm("fl")
    em.lab("L_spin")
    e(f"v_readfirstlane_b32 s{sM0}, v{JK}")
    e(f"s_cmp_eq_u32 s{sM0}, 1")
    em.br("s_cbranch_scc1", "L_go", lambda c: True)
    e("s_sleep 2")
    e(f"s_lshl_b32 s{sM0}, s{sRG}, 2")
    e(f"buffer_load_dword v{JK}, v0, {srd(S_DBG)}, s{sM0} offen sc0 sc1")
    e("s_waitcnt vmcnt(0)")
    e(f"s_sub_u32 s{sBND}, s{sBND}, 1")
    e("s_cbranch_scc0 L_spin")
    em.lab("L_go")
    em.wlg("rr")
    for i in (0, 2): e(f"v_pk_add_f32 {v2(t[i])}, {v2(t[i])}, {v2(t[4+i])}")
    e(f"v_pk_add_f32 {v2(t[0])}, {v2(t[0])}, {v2(t[2])}")
    e(f"v_add_f32 v{t[0]}, v{t[0]}, v{t[1]}")
    e(f"v_bfe_u32 v{t[2]}, v{t[0]}, 1, 16"); e(f"v_lshrrev_b32 v{t[1]}, 16, v{t[0]}")
    e(f"v_or_b32 v{t[2]}, 1, v{t[2]}"); e(f"v_or_b32 v{t[1]}, 1, v{t[1]}")
    e(f"v_lshlrev_b32 v{t[2]}, s{sT0}, v{t[2]}"); e(f"v_lshlrev_b32 v{t[1]}, s{sT0}, v{t[1]}")
    Hh, Ll, Ho, Lo = t[4], t[6], t[8], t[10]
    e(f"v_and_b32 v{Lo}, s{sT1}, v{t[2]}"); e(f"v_and_b32 v{Lo+1}, s{sT2}, v{t[2]}")
    e(f"buffer_atomic_or_x2 {vr(Lo,2)}, v{aZw}, {srd(S_WS)}, s{sKAP} offen offset:8 sc0 sc1", "at")
    e(f"v_and_b32 v{Ho}, s{sT1}, v{t[1]}"); e(f"v_and_b32 v{Ho+1}, s{sT2}, v{t[1]}")
    e(f"buffer_atomic_or_x2 {vr(Ho,2)}, v{aZw}, {srd(S_WS)}, s{sKAP} offen sc0 sc1", "at")
    e(f"v_and_b32 v{Ll}, s{sT1}, v{t[2]}"); e(f"v_and_b32 v{Ll+1}, s{sT2}, v{t[2]}")
    e(f"v_and_b32 v{Hh}, s{sT1}, v{t[1]}"); e(f"v_and_b32 v{Hh+1}, s{sT2}, v{t[1]}")
    e(f"s_mov_b32 s{sT0}, 0x00010001")
    e(f"v_lshlrev_b32 v{aXr}, 1, v{vL}")
    e(f"s_lshl_b32 s{sT1}, s{sRG}, 7")
    em.wvm("at")
    for i in range(2): e(f"v_or_b32 v{Ho+i}, v{Ho+i}, v{Hh+i}")
    e(f"v_and_b32 v{t[0]}, v{Ho}, v{Ho+1}"); e(f"v_and_b32 v{t[0]}, s{sT0}, v{t[0]}")
    e(f"v_cmp_eq_u32 vcc, s{sT0}, v{t[0]}")
    for i in range(2): e(f"v_or_b32 v{Lo+i}, v{Lo+i}, v{Ll+i}")
    e(f"s_and_b64 exec, exec, vcc")
    em.br("s_cbranch_execz", fin, lambda c: False)
    em.lab("L_lchk")
    e(f"v_and_b32 v{t[0]}, v{Lo}, v{Lo+1}"); e(f"v_and_b32 v{t[0]}, s{sT0}, v{t[0]}")
    e(f"v_cmp_ne_u32 vcc, s{sT0}, v{t[0]}")
    for i in range(2):
        e(f"v_lshlrev_b32 v{t[0+2*i]}, 16, v{Ho+i}")
        e(f"v_and_b32 v{t[1+2*i]}, 0xfffe0000, v{Ho+i}")
        e(f"v_and_b32 v{t[0+2*i]}, 0xfffe0000, v{t[0+2*i]}")
    em.br("s_cbranch_vccz", "L_sum", lambda c: True)
    e(f"buffer_load_dwordx2 {vr(Lo,2)}, v{aZw}, {srd(S_WS)}, s{sKAP} offen offset:8 sc0 sc1")
    e("s_waitcnt vmcnt(0)")
    e(f"s_sub_u32 s{sBND}, s{sBND}, 1")
    e("s_cbranch_scc0 L_lchk")
    em.lab("L_sum")
    for i in range(2):
        e(f"v_and_b32 v{t[4+2*i]}, 0xfffe, v{Lo+i}")
        e(f"v_lshrrev_b32 v{t[5+2*i]}, 17, v{Lo+i}")
    for i in range(4): e(f"v_lshl_or_b32 v{t[i]}, v{t[4+i]}, {1 + (i & 1)}, v{t[i]}")
    e(f"v_pk_add_f32 {v2(t[0])}, {v2(t[0])}, {v2(t[2])}")
    e(f"v_add_f32 v{t[0]}, v{t[0]}, v{t[1]}")
    e(f"v_cvt_pk_bf16_f32 v{t[0]}, v{t[0]}, v{t[0]}")
    e(f"buffer_store_short v{t[0]}, v{aXr}, {srd(S_OUT)}, s{sT1} offen")
    if STAMPS:
        em.lab("L_flush")
        e("s_waitcnt vmcnt(0)")
        e("s_memtime s[4:5]"); e("s_memrealtime s[6:7]"); e("s_waitcnt lgkmcnt(0)")
        e(f"s_lshl_b32 s8, s2, 4"); e(f"s_add_u32 s8, s8, s{sW}"); e("s_lshl_b32 s8, s8, 7"); e("s_add_u32 s8, s8, 0x100000")
        e("s_mov_b64 exec, 1"); e("v_mov_b32 v3, 0")
        for k in range(len(SN)):
            e(f"v_mov_b32 v4, s{sreg(k)}")
            e(f"buffer_store_dword v4, v3, {srd(S_WS)}, s8 offen offset:{4*k}"); e("s_nop 2")
        e("v_mov_b32 v4, s4"); e(f"buffer_store_dword v4, v3, {srd(S_WS)}, s8 offen offset:{4*len(SN)}"); e("s_nop 2")
        SN.append("end")
        e("v_mov_b32 v4, s100"); e(f"buffer_store_dword v4, v3, {srd(S_WS)}, s8 offen offset:124"); e("s_nop 2")
        e("v_mov_b32 v4, s6"); e(f"buffer_store_dword v4, v3, {srd(S_WS)}, s8 offen offset:120")
        e("s_waitcnt vmcnt(0)")

ZCG = 2
def main():
    prologue()
    e(f"s_cmp_eq_u32 s{sKAP}, 1"); em.br("s_cbranch_scc1", "L_k1", lambda c: kap(c) == 1)
    global DEF
    DEF = deferred()
    for p in range(14): step(p, 0)
    em.jmp("L_tail")
    em.lab("L_k1")
    DEF = deferred()
    for p in range(14): step(p, 1)
    em.lab("L_tail")
    tail()
    final()
    em.lab("L_end")
    e("s_endpgm")
    ctxs = [(w, cg) for cg in range(4) for w in range(8)]
    L, nfix = resolve(em.L, ctxs, verbose=bool(os.environ.get("V")))
    out = ["; Kernarg: in0 idx, in1 table, in2 se_w1, in3 se_w2, in4 w_bi, in5 w_cross, in6 w_deep1, in7 w_deep2, out, debug, ws",
           "; generated by gen/g6.py -- 256 WGs (64 row groups x 4 column groups) x 8 waves",
           f"; @launch grid=(256,1,1) block=(512,1,1) lds={LDS_TOTAL}"]
    if STAMPS: out.append("; STAMPS: " + " ".join(SN))
    out += ['.amdgcn_target "amdgcn-amd-amdhsa--gfx950"', ".text", f".globl {KN}", ".p2align 8", f".type {KN},@function", f"{KN}:"]
    body = "\n".join(render(L))
    def sub(nbytes):
        nlq = (nbytes // 128 + 4) // 4
        return body.replace("NLQ*128", str(nlq * 128)).replace("NLQ", str(nlq)).replace("NLMAX", str(nbytes - 64))
    import subprocess
    open("_sz.s", "w").write('.amdgcn_target "amdgcn-amd-amdhsa--gfx950"\n.text\n' + sub(20480) + "\n")
    subprocess.run(["clang", "-x", "assembler", "-target", "amdgcn-amd-amdhsa", "-mcpu=gfx950", "-c", "_sz.s", "-o", "_sz.o"], check=True)
    r = subprocess.run("llvm-readelf -S _sz.o | grep ' .text'", shell=True, capture_output=True, text=True)
    f = r.stdout.split(); nbytes = int(f[f.index("PROGBITS") + 3], 16); print("code bytes", nbytes)
    out.append(sub(nbytes))
    out += ['.section .rodata,"a"', ".p2align 6", f".amdhsa_kernel {KN}", "  .amdhsa_next_free_vgpr 256", "  .amdhsa_next_free_sgpr 102",
            "  .amdhsa_accum_offset 256", "  .amdhsa_group_segment_fixed_size 0", "  .amdhsa_kernarg_size 88", "  .amdhsa_user_sgpr_count 2",
            "  .amdhsa_user_sgpr_kernarg_segment_ptr 1", "  .amdhsa_system_sgpr_workgroup_id_x 1", ".end_amdhsa_kernel"]
    open(sys.argv[1], "w").write("\n".join(out) + "\n")
    print("nops inserted:", nfix, "instr:", sum(1 for x in L if x.kind in ("i", "br", "bar")))
main()
```

```python
import sys, os, struct, math
sys.path.insert(0, os.path.dirname(os.path.abspath(__file__)))
from asmlib import *

STAMPS = int(os.environ.get("STAMPS", "0"))
OPT = os.environ.get("OPT", "nodef,pr1,prio,k0a").split(",")
STP = eval(os.environ.get("STP", "(0, 1, 4, 12)"))
KN = "standalone__deep_cross_fibinet__recsys_kernel"
EB, WB, FX = 0, 65536, 131072
IDXB = FX + 24576; SMB = FX; CONB = FX + 8192
SW1, SW2, W2B = SMB + 2048, SMB + 3072, SMB + 4096
PIM = FX
XB0 = EB + 16384
XB1 = WB + 32768
EXB = EB + 49152; ZB = FX + 26624
AB = WB + 16384; RED = XB0
LDS_TOTAL = 163840
S_IDX, S_TAB, S_WC, S_W1, S_TMP, S_OUT, S_DBG, S_WS = 28, 32, 36, 40, 44, 48, 52, 56
sO = [28, 29, 30, 31]
sWo, sWd, sXM = 60, 61, 11
sW, sRG, sCG, sM0, sKAP, sT0, sT1, sT2 = 86, 87, 88, 89, 90, 91, 92, 93
sLO, sHI, sSGN, sF0N = 94, 95, 96, 97
sCLS, sBND = 27, 3
sU0, sU1, sU2 = 8, 9, 10
def srd(b): return f"s[{b}:{b+3}]"
vL = 1
vW1, vSW, aXr, aC, JK, vWC = 2, 3, 4, 5, 6, 7
aE = [8, 9, 10, 11]; aW, aY, aZw, aXw = 12, 13, 14, 15
G = [16, 17, 18, 19]
A1, A2, aI, aXr1 = 20, 24, 26, 27
aC2 = vWC
ACC = 28; AF = 44; BF = 60; XD = 76; WBI = 100
Y = 116; vC = 142; XF = 144; WFP = 176; WFQ = 208; T = 240
XP = WFP; ZP = WFQ; zsv = WFQ + 5; A2B = WFQ + 6; W2R = WFQ + 8
TP = [AF, AF + 16, AF + 32, AF + 48]
SP = AF + 64
def vr(b, n): return f"v[{b}:{b+n-1}]"
def v2(b): return f"v[{b}:{b+1}]"
def fb(x): return "0x%08x" % struct.unpack("<I", struct.pack("<f", x))[0]
C0 = -2.0 * math.sqrt(2.0 / math.pi) * math.log2(math.e)
C1 = C0 * 0.044715

em = Em(); e = em.e
kap = lambda c: ((c[0] >> 1) + (c[0] >> 2)) & 1
uid = [0]
def U(p): uid[0] += 1; return f"L_{p}{uid[0]}"
def put(ls):
    for x in ls: em.L.append(x)

SN = ["start"]
def sreg(k): return 98 if k == 0 else 62 + 2*k
SOFT = os.environ.get("SOFT", "").split()
HARD = os.environ.get("HARD", "*").split()
def soft(name):
    if not STAMPS or name not in SOFT: return
    if name not in SN: SN.append(name)
    k = SN.index(name)
    assert k <= 11
    e(f"s_memtime s[{sreg(k)}:{sreg(k)+1}]")
def stamp(name):
    if not STAMPS: return
    if "*" not in HARD and name not in HARD: return
    if name not in SN: SN.append(name)
    k = SN.index(name)
    assert k <= 11
    e(f"s_memtime s[{sreg(k)}:{sreg(k)+1}]")
    e("s_waitcnt lgkmcnt(0)")

def mf32(d, a, b, c=None):
    e(f"v_mfma_f32_32x32x16_bf16 {vr(d,16)}, {vr(a,4)}, {vr(b,4)}, {'0' if c is None else vr(c,16)}")

def vfield(dst, k, tmp):
    e(f"v_mul_i32_i24 v{dst}, s{sSGN}, v{k}")
    e(f"v_add_u32 v{dst}, s{sF0N}, v{dst}")
    for _ in range(2):
        e(f"v_subrev_u32 v{tmp}, 26, v{dst}")
        e(f"v_min_u32 v{dst}, v{dst}, v{tmp}")

def slot_off(k): return ((k >> 1) & 3) * 16384 + (k & 1) * 8192
def dma_E(k, voff, pre=None):
    e(f"s_add_u32 m0, s{sM0}, {EB + slot_off(k)}")
    if pre: pre()
    fl = os.environ.get("EFL", "") if k < int(os.environ.get("EFN", "26")) else ""
    e(f"buffer_load_dwordx4 v{voff}, {srd(S_TAB)}, 0 offen {fl} lds", f"E{k}")
def dma_W(k):
    e(f"s_add_u32 m0, s{sM0}, {WB + slot_off(k)}")
    if k:
        e(f"s_add_u32 s{sWo}, s{sWo}, s{sWd}"); e(f"s_sub_u32 s{sT2}, s{sWo}, {26*32768}"); e(f"s_min_u32 s{sWo}, s{sWo}, s{sT2}")
    e(f"buffer_load_dwordx4 v{vW1}, {srd(S_W1)}, s{sWo} offen lds", f"W{k}")
def idx_fin(reg): e(f"v_lshl_add_u32 v{reg}, v{reg}, 7, v{vSW}")

def wc_setup(t):
    e(f"s_mul_i32 s{sO[0]}, s{sW}, s{sSGN}"); e(f"s_add_u32 s{sO[0]}, s{sO[0]}, s{sF0N}")
    e(f"v_lshrrev_b32 v{t[0]}, 4, v{vL}")
    for _ in range(2):
        e(f"s_sub_u32 s{sT2}, s{sO[0]}, 26"); e(f"s_min_u32 s{sO[0]}, s{sO[0]}, s{sT2}")
    e(f"v_bfe_u32 v{t[1]}, v{vL}, 1, 2")
    e(f"s_mul_i32 s{sO[0]}, s{sO[0]}, 3328")
    e(f"v_lshl_add_u32 v{t[1]}, v{t[0]}, 2, v{t[1]}")
    e(f"s_cmp_eq_u32 s{sSGN}, 1"); e(f"s_cselect_b32 s{sT1}, 8, 18"); e(f"s_mul_i32 s{sT1}, s{sT1}, 3328")
    e(f"v_bfe_u32 v{t[2]}, v{vL}, 3, 1")
    e(f"v_lshl_add_u32 v{t[2]}, v{t[1]}, 1, v{t[2]}")
    for n in (1, 2):
        e(f"s_add_u32 s{sO[n]}, s{sO[n-1]}, s{sT1}"); e(f"s_sub_u32 s{sT2}, s{sO[n]}, {26*3328}"); e(f"s_min_u32 s{sO[n]}, s{sO[n]}, s{sT2}")
    vfield(t[3], t[2], t[4])
    e(f"s_and_b32 s{sT1}, s{sW}, 1"); e(f"s_add_u32 s{sT1}, s{sT1}, 24")
    e(f"s_mul_i32 s{sO[3]}, s{sT1}, s{sSGN}"); e(f"s_add_u32 s{sO[3]}, s{sO[3]}, s{sF0N}")
    e(f"v_xor_b32 v{t[0]}, v{t[0]}, v{vL}")
    for _ in range(2):
        e(f"s_sub_u32 s{sT2}, s{sO[3]}, 26"); e(f"s_min_u32 s{sO[3]}, s{sO[3]}, s{sT2}")
    e(f"v_and_b32 v{t[0]}, 1, v{t[0]}")
    e(f"s_lshl_b32 s{sT1}, s{sCG}, 5")
    e(f"v_lshl_add_u32 v{t[0]}, v{t[0]}, 4, s{sT1}")
    e(f"s_mul_i32 s{sO[3]}, s{sO[3]}, 3328")
    e(f"v_lshl_add_u32 v{t[0]}, v{t[3]}, 7, v{t[0]}")
    e(f"v_add_u32 v{t[1]}, 3, v{t[1]}"); e(f"v_lshrrev_b32 v{t[1]}, 4, v{t[1]}")
    e(f"v_lshl_add_u32 v{vWC}, v{t[1]}, 30, v{t[0]}")

def dma_WC(part, r):
    tag = "WQ" if part else "WP"
    if "nowc" in OPT: return
    base = (PIM + r * 8192) if not part else (EB + r * 8192 if r < 2 else WB + (r - 2) * 8192)
    l = None
    if r == 3:
        l = U("wc")
        lo = 2 * part
        e(f"s_lshr_b32 s{sT0}, s{sW}, 1"); e(f"s_cmp_lg_u32 s{sT0}, {part}")
        em.br("s_cbranch_scc1", l, lambda c: (c[0] >> 1) != part)
        base -= lo * 1024
    e(f"s_add_u32 m0, s{sM0}, {base}")
    so = sO[r]
    if part:
        e(f"s_add_u32 s{sT0}, s{so}, {26 * 3328}"); so = sT0
    e(f"buffer_load_dwordx4 v{vWC}, {srd(S_WC)}, s{so} offen lds", tag)
    if l: em.lab(l)

def bp_reads(part, R, ks, tg):
    for t in range(7 - ks):
        row = 4*t + 2*ks
        if not part: a, o = aC2, row * 1024
        elif row < 16: a, o = aC, EB + row * 1024
        else: a, o = aC2, (row - 16) * 1024
        e(f"ds_read_b64 {v2(R[t])}, v{a} offset:{o}", f"{tg}{t}")
def bp_perms(dst, R, ks, tg):
    for s in range(3):
        em.wlg(f"{tg}{2*s+1}")
        for ee in range(4):
            e(f"v_perm_b32 v{dst + ee*8 + ks*4 + s}, v{R[2*s+1] + (ee>>1)}, v{R[2*s] + (ee>>1)}, s{sHI if ee & 1 else sLO}")
    if ks == 0:
        em.wlg(f"{tg}6")
        for ee in range(4):
            if ee & 1: e(f"v_lshrrev_b32 v{dst + ee*8 + 3}, 16, v{R[6] + (ee>>1)}")
            else: e(f"v_and_b32 v{dst + ee*8 + 3}, 0xffff, v{R[6] + (ee>>1)}")

def cap(fn):
    with em.capture() as c: fn()
    return c.lines
def weave(main, side, first=0, every=3):
    out = []; side = list(side); k = 0
    for i, x in enumerate(main):
        if side and i >= first and (i - first) % every == 0:
            y = side.pop(0)
            out += y if isinstance(y, list) else [y]
        out.append(x)
    for y in side: out += y if isinstance(y, list) else [y]
    return out
def prio(lines, fr=(0, 0.25, 0.5, 0.75)):
    n = len(lines); marks = {int(f * n): 3 - i for i, f in enumerate(fr)}
    out = []
    for i, x in enumerate(lines):
        if i in marks: out.append(I(f"s_setprio {marks[i]}"))
        out.append(x)
    return out
def mix(vl, ms):
    n = len(ms); k = 0
    for i, m in enumerate(ms):
        m()
        k2 = (i + 1) * len(vl) // n
        put(vl[k:k2]); k = k2

NPRE = 4
LA3 = int(os.environ.get("LA3", "0"))
IFL = os.environ.get("IFL", "")
PH2 = os.environ.get("PH2", "E0 E1 W0 W1 E2 E3")
PH4 = os.environ.get("PH4", "W2 W3 E4 E5")
ST0 = os.environ.get("ST0", "W4 W5 E6 E7")
ST1 = os.environ.get("ST1", "W6 W7")
DEF0 = int(os.environ.get("DEF0", "2"))
iszw = lambda c: (c[1] == ZCG and c[0] == 7)
def prologue():
    t = [T + i for i in range(16)]
    e("s_cmp_ge_u32 s2, 256")
    em.br("s_cbranch_scc1", "L_end", lambda c: False)
    if STAMPS:
        e("s_memtime s[98:99]"); e("s_memrealtime s[100:101]")
    e(f"v_lshrrev_b32 v{t[2]}, 6, v0")
    e("s_load_dwordx4 s[4:7], s[0:1], 0")
    e("s_load_dwordx4 s[12:15], s[0:1], 40")
    e(f"v_readfirstlane_b32 s{sW}, v{t[2]}")
    e("s_load_dwordx4 s[20:23], s[0:1], 64")
    e("s_load_dwordx2 s[24:25], s[0:1], 80")
    e(f"s_getpc_b64 s[{sT1}:{sT2}]")
    e(f"s_bfe_u32 s{sCG}, s2, 0x20003")
    e(f"s_lshl_b32 s{sT0}, s{sW}, 2"); e(f"s_lshr_b32 s{sT0}, 0x77773244, s{sT0}"); e(f"s_and_b32 s{sT0}, s{sT0}, 15"); e(f"s_lshl_b32 s{sT0}, s{sT0}, 3")
    e(f"s_load_dwordx2 s[{S_TMP}:{S_TMP+1}], s[0:1], s{sT0}")
    e(f"s_mul_i32 s{sT0}, s{sCG}, NLQ*128")
    e(f"v_lshl_add_u32 v{t[0]}, v0, 7, s{sT0}")
    e(f"v_min_u32 v{t[0]}, NLMAX, v{t[0]}")
    e(f"v_mov_b32 v{t[1]}, s{sT2}")
    e(f"v_add_co_u32 v{t[0]}, vcc, s{sT1}, v{t[0]}")
    e(f"v_and_b32 v{vL}, 63, v0")
    e(f"s_lshl_b32 s{sM0}, s{sW}, 10")
    e(f"v_addc_co_u32 v{t[1]}, vcc, 0, v{t[1]}, vcc")
    e("v_cmp_gt_u32 vcc, NLQ, v0")
    e(f"v_and_b32 v{t[4]}, 31, v0")
    e(f"s_and_saveexec_b64 s[{sT1}:{sT2}], vcc")
    em.br("s_cbranch_execz", "L_cpf", lambda c: c[0] > 0)
    e(f"global_load_dword v{JK}, v[{t[0]}:{t[1]}], off", "cpf")
    em.lab("L_cpf")
    e("s_mov_b64 exec, -1")
    F0 = [0, 7, 13, 20]; NEG = [0, 0, 0, 0]
    if "norot" in OPT: F0 = [0, 0, 0, 0]
    if "rotpm" in OPT: F0 = [0, 13, 19, 20]; NEG = [0, 1, 1, 0]
    pk = sum((F0[c] | (NEG[c] << 6)) << (8*c) for c in range(4))
    e(f"s_lshl_b32 s{sT0}, s{sCG}, 3"); e(f"s_lshr_b32 s{sT0}, {pk}, s{sT0}")
    e(f"s_bitcmp1_b32 s{sT0}, 6")
    e(f"s_cselect_b32 s{sSGN}, -1, 1"); e(f"s_cselect_b32 s{sWd}, 25, 1"); e(f"s_cselect_b32 s{sT1}, 52, 0")
    e(f"s_and_b32 s{sT0}, s{sT0}, 31")
    e(f"s_add_u32 s{sF0N}, s{sT0}, s{sT1}")
    with em.capture() as c1:
        e(f"s_lshl_b32 s{sWo}, s{sT0}, 15"); e(f"s_lshl_b32 s{sWd}, s{sWd}, 15")
        e(f"s_lshr_b32 s{sT0}, s2, 5"); e(f"s_lshl_b32 s{sT0}, s{sT0}, 3"); e(f"s_and_b32 s{sT1}, s2, 7"); e(f"s_add_u32 s{sRG}, s{sT0}, s{sT1}")
        e(f"s_lshl_b32 s{sT0}, s{sRG}, 3"); e(f"s_add_u32 s{sT0}, s{sT0}, s{sW}"); e(f"s_mul_i32 s{sKAP}, s{sT0}, 832")
        e(f"s_mov_b32 s{S_IDX+2}, {4096*26*4}"); e(f"s_mov_b32 s{S_IDX+3}, 0x00020000")
        e(f"s_add_u32 m0, s{sM0}, {IDXB}")
    with em.capture() as c2:
        vfield(t[5], t[4], t[6])
        e(f"v_lshrrev_b32 v{t[6]}, 5, v{vL}")
        e(f"v_mul_u32_u24 v{t[6]}, 104, v{t[6]}")
        e(f"v_lshl_add_u32 v{t[6]}, v{t[5]}, 2, v{t[6]}")
    interleave(em, c1, c2)
    e("s_waitcnt lgkmcnt(0)")
    def ptr(b, p): e(f"s_mov_b32 s{b}, s{p}"); e(f"s_and_b32 s{b+1}, s{p+1}, 0xffff")
    ptr(S_IDX, 4)
    for j in range(4):
        if j: e(f"s_add_u32 m0, m0, 48")
        e(f"buffer_load_dword v{t[6]}, {srd(S_IDX)}, s{sKAP} offen offset:{208*j} {IFL} lds", "idx")
    if "noM" not in OPT:
        for b, p, sz in ((S_W1, 14, 1664*512), (S_WC, 12, 86528*2)):
            ptr(b, p); e(f"s_mov_b32 s{b+2}, {sz}"); e(f"s_mov_b32 s{b+3}, 0x00020000")
        e(f"v_min_u32 v{t[7]}, 3, v{vL}"); e(f"v_lshlrev_b32 v{t[7]}, 7, v{t[7]}")
        e(f"s_mul_i32 s{sT0}, s2, {26*128}"); e(f"s_lshl_b32 s{sT1}, s{sW}, 9"); e(f"s_add_u32 s{sT0}, s{sT0}, s{sT1}")
        e(f"buffer_load_dword v{JK}, v{t[7]}, {srd(S_W1)}, s{sT0} offen", "tch")
        e(f"s_mul_i32 s{sT0}, s2, {6*128}"); e(f"s_lshl_b32 s{sT1}, s{sW}, 7"); e(f"s_add_u32 s{sT0}, s{sT0}, s{sT1}")
        e(f"buffer_load_dword v{JK}, off, {srd(S_WC)}, s{sT0}", "tch")
    MT = int(os.environ.get("MT", "0"))
    def table_touch():
        e(f"v_min_u32 v{t[11]}, {MT-1}, v{vL}"); e(f"v_lshlrev_b32 v{t[11]}, 7, v{t[11]}")
        e(f"s_lshl_b32 s{sT0}, s2, 3"); e(f"s_add_u32 s{sT0}, s{sT0}, s{sW}"); e(f"s_mul_i32 s{sT0}, s{sT0}, {MT*128}")
        e(f"buffer_load_dword v{JK}, v{t[11]}, {srd(S_TAB)}, s{sT0} offen", "tch")
    if MT and "MTearly" in OPT:
        ptr(S_TAB, 6); e(f"s_mov_b32 s{S_TAB+2}, 12800000"); e(f"s_mov_b32 s{S_TAB+3}, 0x00020000")
        table_touch()
    e(f"s_and_b32 s{S_TMP+1}, s{S_TMP+1}, 0xffff")
    e(f"s_mov_b32 s{S_TMP+3}, 0x00020000")
    e(f"s_lshl_b32 s{sT0}, s{sCG}, 7")
    e(f"v_lshlrev_b32 v{t[6]}, 4, v{vL}")
    e(f"s_movk_i32 s{S_TMP+2}, 676"); e(f"s_cmp_ge_u32 s{sW}, 4"); e(f"s_cselect_b32 s{S_TMP+2}, 512, s{S_TMP+2}"); e(f"s_cselect_b32 s{sT0}, s{sT0}, 0")
    e(f"v_and_b32 v{t[8]}, 16, v{t[6]}")
    e(f"s_lshl_b32 s{sT1}, s{sW}, 12"); e(f"s_lshl_b32 s{sT2}, s{sCG}, 5"); e(f"s_add_u32 s{sT1}, s{sT1}, s{sT2}")
    e(f"v_lshrrev_b32 v{t[7]}, 1, v{vL}")
    e(f"s_cmp_lt_u32 s{sW}, 2"); e(f"s_cselect_b32 s{S_TMP+2}, 8192, s{S_TMP+2}"); e(f"s_cselect_b32 s{sT0}, s{sT1}, s{sT0}")
    e(f"s_cselect_b32 s{sT1}, 7, 5")
    e(f"s_add_u32 m0, s{sM0}, {SMB}")
    e(f"v_lshl_add_u32 v{t[7]}, v{t[7]}, s{sT1}, v{t[8]}")
    e(f"buffer_load_dwordx4 v{t[7]}, {srd(S_TMP)}, s{sT0} offen lds", "sm")
    with em.capture() as c1:
        for b, p, sz in ((S_W1, 14, 1664*512), (S_TAB, 6, 12800000), (S_WC, 12, 86528*2)):
            if b != S_TAB and "noM" not in OPT: continue
            ptr(b, p); e(f"s_mov_b32 s{b+2}, {sz}"); e(f"s_mov_b32 s{b+3}, 0x00020000")
        e(f"s_add_u32 s{sT0}, s{sM0}, {IDXB}")
    with em.capture() as c2:
        e(f"v_and_b32 v{t[5]}, 7, v{vL}")
        e(f"v_lshrrev_b32 v{t[7]}, 2, v{vL}")
        e(f"v_and_b32 v{t[7]}, 4, v{t[7]}")
        e(f"v_xor_b32 v{t[7]}, v{t[7]}, v{t[5]}")
        e(f"v_lshrrev_b32 v{t[8]}, 3, v0")
        e(f"v_lshlrev_b32 v{t[8]}, 9, v{t[8]}")
        e(f"v_lshl_add_u32 v{t[7]}, v{t[7]}, 4, v{t[8]}")
        e(f"v_mov_b32 v{t[8]}, s{sCG}")
        e(f"v_lshl_add_u32 v{vW1}, v{t[8]}, 7, v{t[7]}")
        e(f"v_bfe_u32 v{t[7]}, v0, 4, 3")
        e(f"v_xor_b32 v{t[7]}, v{t[7]}, v{t[5]}")
        e(f"v_lshlrev_b32 v{vSW}, 4, v{t[7]}")
        e(f"v_lshrrev_b32 v{t[4]}, 3, v{vL}")
    interleave(em, c1, c2)
    e(f"v_lshl_add_u32 v{aI}, v{t[4]}, 7, s{sT0}")
    if MT and "MTearly" not in OPT: table_touch()
    nW0 = int(os.environ.get("NW0", "0"))
    for k in range(nW0): dma_W(k)
    def touch_setup():
        nl = (26 - TW0)
        e(f"v_min_u32 v{t[9]}, {nl-1}, v{vL}")
        e(f"v_mad_u32_u24 v{t[9]}, v{t[2]}, {nl}, v{t[9]}")
        e(f"s_lshr_b32 s{sT0}, s2, 5"); e(f"s_mul_i32 s{sT0}, s{sT0}, {nl*8}")
        e(f"s_add_u32 s{sT1}, s{sF0N}, {TW0}"); e(f"s_lshl_b32 s{sT1}, s{sT1}, 6"); e(f"s_add_u32 s{sT0}, s{sT0}, s{sT1}")
        e(f"v_add_u32 v{t[9]}, s{sT0}, v{t[9]}")
        e(f"v_subrev_u32 v{t[11]}, 1664, v{t[9]}"); e(f"v_min_u32 v{t[9]}, v{t[9]}, v{t[11]}")
        e(f"v_lshlrev_b32 v{t[9]}, 9, v{t[9]}")
        e(f"v_lshl_add_u32 v{t[9]}, v{t[8]}, 7, v{t[9]}")
        e(f"v_min_u32 v{t[10]}, 5, v{vL}")
        e(f"v_mad_u32_u24 v{t[10]}, v{t[2]}, 6, v{t[10]}")
        e(f"v_lshlrev_b32 v{t[10]}, 7, v{t[10]}")
    TW0 = int(os.environ.get("TW0", "8"))
    if "T" in (PH2 + " " + PH4 + " " + ST0 + " " + ST1 + " " + os.environ.get("PH0", "")).split(): touch_setup()
    issue(os.environ.get("PH0", ""))
    e(f"v_and_b32 v{t[7]}, 5, v0")
    e(f"v_cmp_eq_u32 s[{sT1}:{sT2}], 0, v{t[7]}")
    e(f"v_mov_b32 v{t[7]}, 0x3c80")
    e(f"v_lshlrev_b32 v{t[8]}, 2, v0")
    e(f"v_cndmask_b32 v{t[7]}, 0, v{t[7]}, s[{sT1}:{sT2}]")
    e(f"v_add_u32 v{t[8]}, {CONB}, v{t[8]}")
    e(f"ds_write_b32 v{t[8]}, v{t[7]}", "con")
    addr_setup()
    em.wvm("idx")
    stamp("idx")
    e(f"ds_read_b128 {vr(AF, 4)}, v{aI}", "I0")
    e(f"ds_read_b128 {vr(G[0], 4)}, v{aI} offset:16", "I1")
    issue(PH2)
    stamp("iss")
    em.wvm("sm")
    em.wlg("*")
    for k in range(8):
        if f"E{k}" not in PH2.split(): idx_fin(ereg(k))
    em.bar(["sm", "con"])
    wbi_reads()
    if "nodef" in OPT:
        for c in deferred(): put(c)
    issue(PH4, False)
    stamp("pre")

def ereg(k): return AF + k if k < 4 else G[k - 4]
def touches():
    e(f"buffer_load_dword v{JK}, v{T+9}, {srd(S_W1)}, 0 offen", "tch")
    e(f"s_lshr_b32 s{sT0}, s2, 3"); e(f"s_mul_i32 s{sT0}, s{sT0}, {43*128}")
    e(f"buffer_load_dword v{JK}, v{T+10}, {srd(S_WC)}, s{sT0} offen", "tch")
def issue(seq, fin=True):
    for it in seq.split():
        if it == "T": touches()
        elif it == "B": em.bar()
        elif it[0] == "W": dma_W(int(it[1:]))
        elif it[0] == "C": dma_WC(0, int(it[1:]))
        elif it == "L":
            e(f"v_min_u32 v{T+10}, 5, v{vL}"); e(f"v_lshlrev_b32 v{T+10}, 7, v{T+10}")
            e(f"s_lshr_b32 s{sT0}, s2, 3"); e(f"s_mul_i32 s{sT0}, s{sT0}, {43*128}"); e(f"s_mul_i32 s{sT1}, s{sW}, {6*128}"); e(f"s_add_u32 s{sT0}, s{sT0}, s{sT1}")
            e(f"buffer_load_dword v{JK}, v{T+10}, {srd(S_WC)}, s{sT0} offen", "tch")
        else:
            k = int(it[1:])
            def pre():
                em.wlg(f"I{k>>2}"); idx_fin(ereg(k))
            dma_E(k, ereg(k), pre if fin else None)

def flag_store():
    l = U("z")
    e(f"s_lshl_b32 s{sT0}, s{sCG}, 3"); e(f"s_add_u32 s{sT0}, s{sT0}, s{sW}")
    e(f"s_cmp_lg_u32 s{sT0}, {ZCG*8+7}")
    em.br("s_cbranch_scc1", l, lambda c: not iszw(c))
    em.wvm("zero")
    e(f"v_mov_b32 v{T}, 1"); e(f"v_mov_b32 v{T+1}, 0")
    e(f"s_lshl_b32 s{sT0}, s{sRG}, 2")
    e("s_mov_b64 exec, 1")
    e(f"buffer_store_dword v{T}, v{T+1}, {srd(S_DBG)}, s{sT0} offen sc0 sc1", "flag")
    e("s_mov_b64 exec, -1")
    em.lab(l)

def addr_setup():
    t = [WBI + i for i in range(16)]
    b, h, sw, row = t[0], t[1], t[2], t[3]
    e(f"s_lshr_b32 s{sT0}, s{sW}, 1"); e(f"s_lshr_b32 s{sT1}, s{sW}, 2"); e(f"s_add_u32 s{sKAP}, s{sT0}, s{sT1}"); e(f"s_and_b32 s{sKAP}, s{sKAP}, 1")
    e(f"v_and_b32 v{b}, 31, v{vL}"); e(f"v_lshrrev_b32 v{h}, 5, v{vL}")
    e(f"v_bfe_u32 v{sw}, v{vL}, 1, 3")
    e(f"s_and_b32 s{sT0}, s{sW}, 1"); e(f"s_lshl_b32 s{sT0}, s{sT0}, 5")
    e(f"v_add_u32 v{row}, s{sT0}, v{b}")
    e(f"s_lshl_b32 s{sT1}, s{sT1}, 13")
    e(f"v_lshl_add_u32 v{t[4]}, v{row}, 7, s{sT1}")
    e(f"v_xor_b32 v{t[5]}, v{h}, v{sw}")
    e(f"v_lshl_add_u32 v{aE[0]}, v{t[5]}, 4, v{t[4]}")
    for ks in range(1, 4): e(f"v_xor_b32 v{aE[ks]}, {ks << 5}, v{aE[0]}")
    e(f"v_bfe_u32 v{t[4]}, v{vL}, 2, 2")
    e(f"v_lshl_add_u32 v{t[5]}, v{h}, 3, v{t[4]}")
    e(f"s_add_u32 s{sT1}, s{sT1}, {WB}")
    e(f"v_lshl_add_u32 v{t[5]}, v{t[5]}, 7, s{sT1}")
    e(f"v_bfe_u32 v{t[6]}, v{vL}, 4, 1")
    e(f"s_lshr_b32 s{sT0}, s{sW}, 2")
    e(f"v_xor_b32 v{t[6]}, s{sT0}, v{t[6]}")
    e(f"v_bfe_u32 v{t[7]}, v{vL}, 1, 1")
    e(f"v_lshl_add_u32 v{t[6]}, v{t[6]}, 1, v{t[7]}")
    e(f"s_and_b32 s{sT0}, s{sW}, 2"); e(f"s_lshl_b32 s{sT0}, s{sT0}, 1")
    e(f"v_or_b32 v{t[6]}, s{sT0}, v{t[6]}")
    e(f"v_lshrrev_b32 v{t[7]}, 1, v{vL}"); e(f"v_and_b32 v{t[7]}, 4, v{t[7]}")
    e(f"v_xor_b32 v{t[6]}, v{t[6]}, v{t[7]}")
    e(f"v_lshl_add_u32 v{t[5]}, v{t[6]}, 4, v{t[5]}")
    e(f"v_and_b32 v{t[7]}, 1, v{vL}")
    e(f"v_lshl_add_u32 v{aW}, v{t[7]}, 3, v{t[5]}")
    e(f"s_lshl_b32 s{sT0}, s{sCG}, 1"); e(f"s_lshr_b32 s{sT1}, s{sW}, 2"); e(f"s_add_u32 s{sT0}, s{sT0}, s{sT1}")
    e(f"v_xor_b32 v{t[4]}, s{sT0}, v{sw}")
    e(f"v_lshlrev_b32 v{t[5]}, 13, v{h}")
    e(f"v_lshl_add_u32 v{t[5]}, v{row}, 7, v{t[5]}")
    e(f"v_lshl_add_u32 v{t[5]}, v{t[4]}, 4, v{t[5]}")
    e(f"s_and_b32 s{sT0}, s{sW}, 2"); e(f"s_lshl_b32 s{sT0}, s{sT0}, 2")
    e(f"v_add_u32 v{aY}, s{sT0}, v{t[5]}")
    e(f"v_and_b32 v{t[4]}, 15, v{vL}")
    e(f"v_lshlrev_b32 v{t[4]}, 3, v{t[4]}")
    e(f"v_lshl_add_u32 v{t[4]}, v{h}, 8, v{t[4]}")
    e(f"v_and_b32 v{t[5]}, 16, v{vL}")
    e(f"v_lshl_add_u32 v{t[4]}, v{t[5]}, 9, v{t[4]}")
    e(f"v_add_u32 v{XD}, {SMB}, v{t[4]}")

def wbi_reads():
    for ks in range(4):
        for uu in range(2):
            e(f"ds_read_b64_tr_b16 {vr(WBI + ks*4 + uu*2, 2)}, v{XD} offset:{(16*ks + 4*uu)*32}", "wbi")

def deferred():
    global sT0, sT1, sT2
    sv = (sT0, sT1, sT2); sT0, sT1, sT2 = sU0, sU1, sU2
    ch = []
    def chunk(fn):
        with em.capture() as c: fn()
        ch.append(c.lines)
    t = [XF + i for i in range(16)]
    u = [XF + 16 + i for i in range(16)]
    def ptr(b, p): e(f"s_mov_b32 s{b}, s{p}"); e(f"s_and_b32 s{b+1}, s{p+1}, 0xffff")
    def c_srd():
        for b, p, sz in ((S_OUT, 20, 8192), (S_DBG, 22, 256), (S_WS, 24, 1 << 28)):
            ptr(b, p); e(f"s_mov_b32 s{b+2}, {sz}"); e(f"s_mov_b32 s{b+3}, 0x00020000")
    chunk(c_srd)
    b_, h, row = t[0], t[1], t[3]
    def c_a():
        e(f"s_mov_b32 s{sLO}, 0x05040100"); e(f"s_mov_b32 s{sHI}, 0x07060302")
        e(f"v_and_b32 v{b_}, 31, v{vL}"); e(f"v_lshrrev_b32 v{h}, 5, v{vL}")
        e(f"s_and_b32 s{sT0}, s{sW}, 1"); e(f"s_lshl_b32 s{sT0}, s{sT0}, 5")
        e(f"v_add_u32 v{row}, s{sT0}, v{b_}")
        e(f"s_and_b32 s{sT0}, s{sW}, 2"); e(f"s_lshl_b32 s{sT0}, s{sT0}, 2"); e(f"s_lshr_b32 s{sT1}, s{sW}, 2")
        e(f"v_bfe_u32 v{t[4]}, v{vL}, 3, 1")
    def c_b():
        e(f"v_xor_b32 v{t[4]}, s{sT1}, v{t[4]}")
        e(f"v_lshl_add_u32 v{t[5]}, v{vL}, 5, s{sT0}")
        e(f"v_lshl_add_u32 v{aC}, v{t[4]}, 4, v{t[5]}")
        e(f"s_lshl_b32 s{sT0}, s{sKAP}, 1"); e(f"s_add_u32 s{sT0}, s{sT0}, s{sT1}")
        e(f"s_lshl_b32 s{sT1}, s{sT0}, 10"); e(f"s_add_u32 s{sT1}, s{sT1}, {ZB}")
        e(f"v_lshl_add_u32 v{aZw}, v{row}, 4, s{sT1}")
    def c_c():
        e(f"s_and_b32 s{sT1}, s{sW}, 1"); e(f"s_lshl_b32 s{sT1}, s{sT1}, 10"); e(f"s_lshr_b32 s{sT2}, s{sW}, 2"); e(f"s_lshl_b32 s{sT2}, s{sT2}, 9"); e(f"s_add_u32 s{sT2}, s{sT2}, s{sT1}")
        e(f"s_mul_i32 s{sT0}, s{sKAP}, {XB1 - XB0}"); e(f"s_add_u32 s{sT2}, s{sT2}, s{sT0}"); e(f"s_add_u32 s{sT2}, s{sT2}, {XB0}")
        e(f"v_lshl_add_u32 v{t[5]}, v{b_}, 4, s{sT2}"); e(f"v_lshl_add_u32 v{aXw}, v{h}, 13, v{t[5]}")
    def c_d():
        e(f"s_lshr_b32 s{sT0}, s{sW}, 1"); e(f"s_lshl_b32 s{sT0}, s{sT0}, 13"); e(f"s_add_u32 s{sT0}, s{sT0}, s{sT1}")
        e(f"v_lshl_add_u32 v{aXr}, v{vL}, 4, s{sT0}")
        e(f"v_add_u32 v{aXr1}, {XB1}, v{aXr}")
    def c_e():
        e(f"v_mov_b32 v{vC}, {fb(C1)}"); e(f"v_mov_b32 v{vC+1}, {fb(C0)}")
        e(f"v_mov_b32 v{ZP + 3}, 0")
    for f in (c_a, c_b, c_c, c_d, c_e): chunk(f)
    def p_a():
        e(f"s_and_b32 s{sT0}, s{sW}, 2"); e(f"s_lshl_b32 s{sT0}, s{sT0}, 5"); e(f"s_lshr_b32 s{sT1}, s{sW}, 2"); e(f"s_lshl_b32 s{sT1}, s{sT1}, 5")
        e(f"s_add_u32 s{sT0}, s{sT0}, s{sT1}"); e(f"s_add_u32 s{sT0}, s{sT0}, {W2B}")
        e(f"v_lshrrev_b32 v{t[7]}, 5, v{vL}"); e(f"v_lshl_add_u32 v{t[7]}, v{t[7]}, 3, s{sT0}")
        for q in range(2): e(f"ds_read_b64 {v2(u[12+2*q])}, v{t[7]} offset:{16*q}", "w2")
        e(f"v_and_b32 v{t[1]}, 15, v{vL}")
        e(f"v_lshrrev_b32 v{t[3]}, 4, v{vL}")
        e(f"v_min_u32 v{t[1]}, 12, v{t[1]}")
        e(f"v_lshlrev_b32 v{t[4]}, 1, v{t[1]}")
    def p_b():
        vfield(t[5], t[4], t[6])
        e(f"v_add_u32 v{t[4]}, 1, v{t[4]}")
        vfield(t[8], t[4], t[6])
        e(f"v_mul_u32_u24 v{t[6]}, 208, v{t[3]}")
        e(f"v_add_u32 v{t[6]}, {SW2}, v{t[6]}")
        e(f"v_lshl_add_u32 v{t[5]}, v{t[5]}, 1, v{t[6]}")
        e(f"v_lshl_add_u32 v{t[8]}, v{t[8]}, 1, v{t[6]}")
    def p_c():
        for k in range(4): e(f"ds_read_u16 v{u[8+k]}, v{t[5]} offset:{52*k}", "a2")
        for k in range(4): e(f"ds_read_u16 v{t[12+k]}, v{t[8]} offset:{52*k}", "a2")
        vfield(t[2], t[3], t[6])
    def p_d():
        e(f"v_lshlrev_b32 v{t[1]}, 1, v{t[1]}")
        e(f"v_mad_u32_u24 v{t[5]}, v{t[2]}, 26, v{t[1]}")
        e(f"s_cmp_eq_u32 s{sSGN}, 1"); e(f"s_cselect_b32 s{sT0}, 4, 22"); e(f"s_mul_i32 s{sT0}, s{sT0}, 26")
        em.wlg("w2")
        for d in range(4):
            e(f"v_lshlrev_b32 v{W2R+2*d}, 16, v{u[12+d]}"); e(f"v_and_b32 v{W2R+2*d+1}, 0xffff0000, v{u[12+d]}")
    def p_k(ks):
        for k in ks:
            if k:
                e(f"v_add_u32 v{t[5]}, s{sT0}, v{t[5]}"); e(f"v_subrev_u32 v{t[6]}, 676, v{t[5]}"); e(f"v_min_u32 v{t[5]}, v{t[5]}, v{t[6]}")
            e(f"v_add_u32 v{t[9+(k&1)]}, {SW1}, v{t[5]}")
            e(f"ds_read_u16 v{u[k] if k < 6 else A1+3}, v{t[9+(k&1)]}", "a1")
    for f in (p_a, p_b, p_c, p_d, lambda: p_k([0, 1]), lambda: p_k([2, 3]), lambda: p_k([4, 5]), lambda: p_k([6])): chunk(f)
    with em.capture() as c: wc_setup(t)
    ls = c.lines
    cur = []
    for i, x in enumerate(ls):
        cur.append(x)
        if len(cur) >= 9 and not x.t.startswith("s_cmp"):
            ch.append(cur); cur = []
    if cur: ch.append(cur)
    def p_z():
        em.wlg("a2", "a1")
        for d in range(2): e(f"v_lshl_or_b32 v{A2+d}, v{u[8+2*d+1]}, 16, v{u[8+2*d]}")
        for d in range(2): e(f"v_lshl_or_b32 v{A2B+d}, v{t[12+2*d+1]}, 16, v{t[12+2*d]}")
        for d in range(3): e(f"v_lshl_or_b32 v{A1+d}, v{u[2*d+1]}, 16, v{u[2*d]}")
    chunk(p_z)
    sT0, sT1, sT2 = sv
    return ch

def zero_store():
    l = U("z")
    e(f"s_lshl_b32 s{sT0}, s{sCG}, 3"); e(f"s_add_u32 s{sT0}, s{sT0}, s{sW}")
    e(f"s_cmp_lg_u32 s{sT0}, {ZCG*8+7}")
    em.br("s_cbranch_scc1", l, lambda c: not iszw(c))
    for i in range(4): e(f"v_mov_b32 v{T+i}, 0")
    e(f"v_lshlrev_b32 v{T+4}, 4, v{vL}")
    e(f"s_lshl_b32 s{sT0}, s{sRG}, 10")
    e(f"buffer_store_dwordx4 {vr(T,4)}, v{T+4}, {srd(S_WS)}, s{sT0} offen sc0 sc1", "zero")
    em.lab(l)

def frag_reads(p, ks):
    so = (p & 3) * 16384
    e(f"ds_read_b128 {vr(BF + 4*ks, 4)}, v{aE[ks]} offset:{so}", f"F{ks}")
    for uu in range(2):
        e(f"ds_read_b64_tr_b16 {vr(AF + 4*ks + 2*uu, 2)}, v{aW} offset:{so + (16*ks + 4*uu)*128}", f"F{ks}")

def pack_v(s, single=False, part="zx"):
    if "z" in part:
        if single: e(f"v_cvt_pk_bf16_f32 v{ZP+s}, v{XD+8}, 0")
        else: e(f"v_cvt_pk_bf16_f32 v{ZP+s}, v{zsv}, v{XD+16}")
    if "x" not in part: return
    for i in range(8):
        e(f"v_cvt_pk_bf16_f32 v{XP+4*i+s}, v{XD+i}, {'0' if single else 'v%d' % (XD+8+i)}")

def xdst(p): return XD + 8 * ((p >> 1) & 1)

aEXw, aEXr, aZr, aW2, aAw, aAr, aRD = G[0], G[1], G[2], G[3], aI, vSW, vW1
def tail_addr(part, K):
    t = [T + 10 + i for i in range(4)]
    if part == 0:
        e(f"s_lshl_b32 s{sT0}, s{sW}, 11")
        e(f"v_lshl_add_u32 v{aEXw}, v{vL}, 4, s{sT0}")
        e(f"v_xor_b32 v{aEXr}, 8192, v{aEXw}")
        e(f"v_lshrrev_b32 v{t[0]}, 4, v{vL}")
        e(f"s_and_b32 s{sT1}, s{sW}, 3"); e(f"s_lshl_b32 s{sT1}, s{sT1}, 8")
        e(f"v_lshl_add_u32 v{t[0]}, v{t[0]}, 10, s{sT1}")
        e(f"v_and_b32 v{t[1]}, 15, v{vL}"); e(f"v_lshl_add_u32 v{aZr}, v{t[1]}, 4, v{t[0]}")
        e(f"v_add_u32 v{aAw}, {AB}, v{aZr}")
        e(f"v_add_u32 v{aZr}, {ZB}, v{aZr}")
    else:
        e(f"v_lshrrev_b32 v{t[0]}, 5, v{vL}"); e(f"v_and_b32 v{t[1]}, 31, v{vL}")
        e(f"s_and_b32 s{sT0}, s{sW}, 1"); e(f"s_lshl_b32 s{sT1}, s{sT0}, 9"); e(f"s_add_u32 s{sT1}, s{sT1}, {AB}")
        e(f"v_lshl_add_u32 v{t[2]}, v{t[0]}, 12, s{sT1}")
        e(f"v_lshl_add_u32 v{aAr}, v{t[1]}, 4, v{t[2]}")
        e(f"s_lshl_b32 s{sT0}, s{sT0}, 10"); e(f"s_lshr_b32 s{sT1}, s{sW}, 1"); e(f"s_lshl_b32 s{sT1}, s{sT1}, 3")
        e(f"s_add_u32 s{sT0}, s{sT0}, s{sT1}"); e(f"s_add_u32 s{sT0}, s{sT0}, {RED}")
        e(f"v_lshl_add_u32 v{t[2]}, v{t[0]}, 2, s{sT0}")
        e(f"v_lshl_add_u32 v{aRD}, v{t[1]}, 5, v{t[2]}")
        pass

def xws(n, tag):
    return cap(lambda: [e(f"ds_write_b{32*n} v{aXw}, {vr(XP + 4*i, n)} offset:{(8*(i>>2) + (i&3))*2048}", tag) for i in range(8)])

SK = int(os.environ.get("SK", "1"))
def step(p, K):
    em.cm(f"---- step {p} kap {K}")
    nop = lambda: None
    tags = [f"E{2*p}", f"E{2*p+1}", f"W{2*p}", f"W{2*p+1}"]
    em.wvm(*tags)
    if p == 12: em.wlg("*")
    em.bar(tags)
    if p in STP: stamp(f"b{p}")
    dm = []
    tp = p + 2
    if 4 <= tp <= 12:
        g = G[2*(p & 1):2*(p & 1) + 2]
        dm = [lambda: dma_E(2*tp, g[0]), lambda: dma_E(2*tp+1, g[1]), lambda: dma_W(2*tp), lambda: dma_W(2*tp+1)]
    if p <= 1:
        dm = [lambda k=k: issue(k, False) for k in (ST0, ST1)[p].split()]
        while len(dm) > 4:
            f1, f2 = dm[-2], dm[-1]; dm = dm[:-2] + [lambda f1=f1, f2=f2: (f1(), f2())]
    early = (PH4 + " " + ST0 + " " + ST1).split()
    if tp == 13: dm = [lambda r=r: dma_WC(0, r) for r in range(3) if f"C{r}" not in early] + [nop]
    if tp == 14: dm = [lambda: dma_WC(0, 3), nop, nop, nop]
    dm = [nop] * (4 - len(dm)) + dm
    rdi = 4 <= p + 3 <= 12
    g2 = G[2*((p+1) & 1)]
    def mm(q, ks, what="xd"):
        em.wlg(f"F{ks}", "wbi")
        if (q & 1) == K and "x" in what: mf32(xdst(q), WBI + 4*ks, BF + 4*ks, None if ks == 0 else xdst(q))
        if "d" in what: mf32(ACC, AF + 4*ks, BF + 4*ks, None if (q == 0 and ks == 0) else ACC)
    duty = (p & 1) == K
    pk = None
    if not duty and p >= 1:
        d = p - 1
        pk = (d >> 2) if (d >> 1) & 1 else -1
    def extras():
        e(f"ds_read_b64 {vr(Y + 2*p, 2)}, v{aY} offset:{(p & 3)*16384}", "cap")
        if rdi: e(f"ds_read_b64 {v2(g2)}, v{aI} offset:{8*(p+3)}", "Ig")
    slot = 0
    if p == 12 and "pr1" in OPT: e("s_setprio 3")
    frag_reads(p, 0)
    if p >= 1: mm(p - 1, 3)
    frag_reads(p, 1)
    dm[0](); slot = 1
    if p < 12:
        mm(p, 0)
        frag_reads(p, 2)
        if pk == -1: e(f"v_mov_b32 v{zsv}, v{XD+8}")
        elif pk is not None: pack_v(pk)
        dm[1]()
        if p == 11: tail_addr(0, K)
        mm(p, 1)
        frag_reads(p, 3); extras()
        dm[2]()
        if p == 11: tail_addr(1, K)
        mm(p, 2)
        dm[3]()
        if rdi:
            em.wlg("Ig"); idx_fin(g2); idx_fin(g2 + 1)
        if p == 2 and K == 0: zero_store()
        if p == 5 and K == 0: flag_store()
        return
    EXW = cap(lambda: [e(f"ds_write_b128 v{aEXw}, {vr(ACC + 8 + 4*qq, 4)} offset:{EXB + qq*1024}", "xw") for qq in range(2)])
    if duty:
        mm(p, 0); frag_reads(p, 2)
        mm(p, 1); frag_reads(p, 3); extras()
        mm(p, 2, "x"); mm(p, 3, "x"); mm(p, 2, "d"); mm(p, 3, "d")
        l = U("f")
        e(f"s_cmp_lg_u32 s{sW}, 0"); em.br("s_cbranch_scc1", l, lambda c: c[0] != 0)
        e(f"v_mov_b32 v0, 0"); e(f"s_lshl_b32 s{sT0}, s{sRG}, 2")
        e(f"buffer_load_dword v{JK}, v0, {srd(S_DBG)}, s{sT0} offen sc0 sc1", "fl")
        em.lab(l)
        pack_v(3, True, part="z")
        e(f"ds_write_b128 v{aZw}, {vr(ZP,4)}", "xw")
        put(weave(cap(lambda: pack_v(3, True, part="x")), EXW, 1, 3))
    else:
        XW = xws(3, "xw")
        mm(p, 0); frag_reads(p, 2); frag_reads(p, 3); extras()
        pack_v(pk)
        mm(p, 1)
        e("s_setprio 1")
        e(f"ds_write_b128 v{aZw}, {vr(ZP,4)}", "xw")
        nl = int(os.environ.get("NL", "0"))
        put(XW[:1]); mm(p, 2); put(XW[1:3]); mm(p, 3); put(XW[3:8-nl])
        put(EXW)
    soft("s3")
    em.wlg("*")
    em.bar(["xw"])
    stamp("t1")
    if "ptime" in OPT:
        em.wvm("WP"); em.bar(); stamp("p")
    alpha(K)

def alpha(K):
    t = [T + i for i in range(16)]
    EXR = ACC + 8; W2 = SP
    with em.capture() as D1:
        for i in range(0, 8, 2): e(f"v_pk_add_f32 {v2(ACC+i)}, {v2(ACC+i)}, {v2(EXR+i)}")
        for i in range(0, 8, 2): e(f"v_pk_mul_f32 {v2(EXR+i)}, {v2(ACC+i)}, {v2(ACC+i)}")
        for i in range(0, 8, 2): e(f"v_pk_fma_f32 {v2(EXR+i)}, {v2(EXR+i)}, {v2(vC)}, {v2(vC)} op_sel:[0,0,1] op_sel_hi:[1,0,1]")
        for i in range(0, 8, 2): e(f"v_pk_mul_f32 {v2(EXR+i)}, {v2(EXR+i)}, {v2(ACC+i)}")
        for i in range(0, 8, 2): e(f"v_pk_mul_f32 {v2(W2+i)}, {v2(W2R+i)}, {v2(ACC+i)}")
    Dl = D1.lines
    DA = int(os.environ.get("DA", "0"))
    if DA >= 1: Dl = Dl + cap(lambda: [e(f"v_exp_f32 v{EXR+i}, v{EXR+i}") for i in range(8)])
    if DA >= 2:
        Dl = Dl + cap(lambda: [e(f"v_pk_add_f32 {v2(EXR+i)}, {v2(EXR+i)}, 1.0 op_sel_hi:[1,0]") for i in range(0, 8, 2)])
    EXRD = cap(lambda: [e(f"ds_read_b128 {vr(EXR + 4*q, 4)}, v{aEXr} offset:{EXB + q*1024}", "ex") for q in range(2)])
    def xr1():
        for ee in range(4):
            e(f"ds_read_b128 {vr(XF + ee*8 + 4, 4)}, v{aXr1} offset:{ee*2048}", "X1")
    XR1 = cap(xr1)
    nl = int(os.environ.get("NL", "0"))
    XL = xws(3, "aw")[8-nl:] if nl else []
    if nl: XR1 = []
    if K == 0:
        e("s_setprio 0")
        XW = xws(4, "aw")
        if "k0a" in OPT:
            dma_WC(1, 0); put(XW[:3]); dma_WC(1, 1); put(XW[3:6]); dma_WC(1, 2); put(XW[6:]); dma_WC(1, 3)
            soft("a3")
            put(EXRD)
            put(XR1[:len(XR1)//2])
            em.wlg("ex")
            put(weave(Dl, XR1[len(XR1)//2:], 2, 3))
        else:
            dma_WC(1, 0)
            put(EXRD)
            dma_WC(1, 1); put(XW[:1]); dma_WC(1, 2); put(XW[1:2]); dma_WC(1, 3)
            em.wlg("ex")
            put(weave(Dl, XW[2:], 0, 3))
            put(XR1)
        soft("a4")
        return
    ZF, S1, g = t[0], AF, AF + 8
    e("s_setprio 3")
    e(f"ds_read_b128 {vr(ZF,4)}, v{aZr}", "zf")
    dma_WC(1, 0)
    e(f"s_mov_b32 s{sU1+1}, {fb(-math.log2(math.e))}"); e(f"s_mov_b32 s{sU1+2}, {fb(-math.log2(math.e))}")
    em.wlg("zf")
    e(f"v_mfma_f32_16x16x32_bf16 {vr(S1,4)}, {vr(A1,4)}, {vr(ZF,4)}, 0")
    if "exl" not in OPT: put(EXRD)
    dma_WC(1, 1)
    soft("a0")
    pk_gelu(S1, g, 4)
    for i in (0, 2): e(f"v_pk_mul_f32 {v2(g+i)}, {v2(g+i)}, {v2(S1+i)}")
    for d in range(2): e(f"v_cvt_pk_bf16_f32 v{ZF+d}, v{g+2*d}, v{g+2*d+1}")
    soft("a1")
    dma_WC(1, 2)
    e(f"v_mfma_f32_16x16x16_bf16 {vr(S1,4)}, {vr(A2,2)}, {vr(ZF,2)}, 0")
    e(f"v_mfma_f32_16x16x16_bf16 {vr(S1+4,4)}, {vr(A2B,2)}, {vr(ZF,2)}, 0")
    dma_WC(1, 3)
    if "exl" not in OPT:
        em.wlg("ex")
        put(Dl[:4]); Dl = Dl[4:]
    for i in range(0, 8, 2): e(f"v_pk_mul_f32 {v2(g+i)}, {v2(S1+i)}, s[{sU1+1}:{sU1+2}]")
    for r in range(8): e(f"v_exp_f32 v{g+r}, v{g+r}")
    if "exl" in OPT: put(EXRD)
    for i in range(0, 8, 2): e(f"v_pk_add_f32 {v2(g+i)}, {v2(g+i)}, 1.0 op_sel_hi:[1,0]")
    for hf in range(2):
        for r in range(4): e(f"v_rcp_f32 v{g+4*hf+r}, v{g+4*hf+r}")
    for hf in range(2):
        P_ = t[4*hf]; gg = g + 4*hf
        for d in range(2): e(f"v_cvt_pk_bf16_f32 v{P_+d}, v{gg+2*d}, v{gg+2*d+1}")
        e(f"v_and_b32 v{P_+2}, 0xffff, v{P_}")
        e(f"v_lshrrev_b32 v{P_+3}, 16, v{P_}")
        e(f"ds_write_b64 v{aAw}, {v2(P_+2)} offset:{8192 + hf*4096}", "aw")
        for d in range(2):
            e(f"v_lshlrev_b32 v{gg+2*d}, 16, v{P_+d}")
            e(f"v_and_b32 v{gg+2*d+1}, 0xffff0000, v{P_+d}")
        e(f"ds_write_b128 v{aAw}, {vr(gg,4)} offset:{hf*4096}", "aw")
    soft("a3")
    em.wlg("ex")
    put(weave(Dl, (XL if K == 1 else []) + XR1, 1, 2 if XL else 4))
    soft("a4")

def pk_gelu(x, t, n):
    for i in range(0, n, 2): e(f"v_pk_mul_f32 {v2(t+i)}, {v2(x+i)}, {v2(x+i)}")
    for i in range(0, n, 2): e(f"v_pk_fma_f32 {v2(t+i)}, {v2(t+i)}, {v2(vC)}, {v2(vC)} op_sel:[0,0,1] op_sel_hi:[1,0,1]")
    for i in range(0, n, 2): e(f"v_pk_mul_f32 {v2(t+i)}, {v2(t+i)}, {v2(x+i)}")
    for i in range(n): e(f"v_exp_f32 v{t+i}, v{t+i}")
    for i in range(0, n, 2): e(f"v_pk_add_f32 {v2(t+i)}, {v2(t+i)}, 1.0 op_sel_hi:[1,0]")
    for i in range(n): e(f"v_rcp_f32 v{t+i}, v{t+i}")

def tail():
    t = [T + i for i in range(16)]
    EXR = ACC + 8; W2 = SP; vD = A2
    WF = WFP; XQ = WFQ
    DA = int(os.environ.get("DA", "0"))
    em.wvm("WP")
    em.wlg("aw")
    em.bar(["aw", "WP"])
    stamp("t2")
    if "qtime" in OPT:
        em.wvm("WQ"); em.bar(); stamp("q")
    AV = aE[0]; ALo = ACC
    Ra = [TP[0] + 2*i for i in range(7)]
    Rb = [T + 2*i for i in range(6)]
    Rc = [ALo, ALo + 2, ALo + 4, ALo + 6, T + 12, T + 14, vC]
    Rd = Rb
    UT = [[TP[1] + i for i in range(13)], [TP[2] + i for i in range(13)]]
    def M(dst, xf, ee, ks): mf32(dst, WF + ee*8 + 4*ks, xf + ee*8 + 4*ks, None if ks == 0 else dst)
    AR = []
    for q in range(4):
        AR += cap(lambda: e(f"ds_read_b64 {v2(ALo + 2*q)}, v{aAr} offset:{8192 + q*1024}", f"a{q}"))
        AR += cap(lambda: e(f"ds_read_b128 {vr(AV + 4*q, 4)}, v{aAr} offset:{q*1024}", f"a{q}"))
    XR0 = cap(lambda: [e(f"ds_read_b128 {vr(XF + ee*8, 4)}, v{aXr} offset:{XB0 + ee*2048}", f"X0{ee}") for ee in range(4)])
    def pre():
        if DA == 0:
            for i in range(8): e(f"v_exp_f32 v{EXR+i}, v{EXR+i}")
        if DA == 1:
            for i in range(0, 8, 2): e(f"v_pk_add_f32 {v2(EXR+i)}, {v2(EXR+i)}, 1.0 op_sel_hi:[1,0]")
        if DA >= 1:
            for i in range(4): e(f"v_rcp_f32 v{EXR+i}, v{EXR+i}")
        for ee in range(4): e(f"v_mov_b32 v{XQ + ee*8 + 7}, 0")
        e(f"v_add_u32 v{aC2}, {PIM}, v{aC}")
    NL = int(os.environ.get("NL", "0"))
    XR1b = cap(lambda: [e(f"ds_read_b128 {vr(XF + ee*8 + 4, 4)}, v{aXr1} offset:{ee*2048}", "X1") for ee in range(4)])
    put(AR[:2])
    put(weave(cap(pre), (XR1b[:2] if NL else []) + AR[2:], 0, 2 if not NL else 1))
    soft("p0")
    def sdots(ee, ks):
        u = UT[ee & 1]
        em.wlg(f"X0{ee}" if ks == 0 else "X1")
        for s in range(4 - ks):
            em.wlg(f"a{s}")
            x = XF + ee*8 + ks*4 + s
            e(f"v_dot2_f32_bf16 v{u[4*s+2*ks]}, v{x}, v{ALo+2*s+ks}, 0")
            if s < 3: e(f"v_dot2_f32_bf16 v{u[4*s+2*ks+1]}, v{x}, v{AV+4*s+2+ks}, 0")
    def scvt(ee):
        u = UT[ee & 1]
        for ks in (1, 0):
            for s in range(4 - ks):
                e(f"v_cvt_pk_bf16_f32 v{XQ + ee*8 + ks*4 + s}, v{u[4*s+2*ks]}, {'v%d' % u[4*s+2*ks+1] if s < 3 else '0'}")
    def scale():
        for pr in range(2):
            for ks in (1, 0):
                for j in range(2): sdots(2*pr + j, ks)
            for j in range(2): scvt(2*pr + j)
    PR = cap(lambda: (bp_reads(0, Ra, 0, "Ca"), bp_reads(0, Rb, 1, "Cb")))
    if NL: XR0 = XR0[:2] + XR1b[2:] + XR0[2:]
    put(weave(cap(scale), XR0 + PR, 0, int(os.environ.get("EV1", "4"))))
    e(f"v_add_u32 v{aC2}, {WB}, v{aC}")
    soft("d2")
    em.wvm("WQ")
    em.bar(["WQ"])
    stamp("t3")
    put(weave(cap(lambda: bp_perms(WF, Ra, 0, "Ca")), cap(lambda: bp_reads(1, Rc, 0, "Cc")), 0, 3))
    def fillA():
        bp_perms(WF, Rb, 1, "Cb")
        for ee in range(4): e(f"v_mov_b32 v{WF + ee*8 + 7}, 0")
    def fillA2():
        if DA == 0:
            for i in range(8): e(f"v_add_f32 v{EXR+i}, 1.0, v{EXR+i}")
        else:
            for i in range(4, 8): e(f"v_rcp_f32 v{EXR+i}, v{EXR+i}")
    mix(cap(fillA) + weave(cap(fillA2), cap(lambda: bp_reads(1, Rd, 1, "Cd"))[:3], 0, 3), [lambda ee=ee: M(TP[ee], XF, ee, 0) for ee in range(4)])
    soft("fa")
    def fillB():
        bp_perms(WF, Rc, 0, "Cc")
        if DA == 0:
            for i in range(4): e(f"v_rcp_f32 v{EXR+i}, v{EXR+i}")
    mix(weave(cap(fillB), cap(lambda: bp_reads(1, Rd, 1, "Cd"))[3:], 1, 4), [lambda ee=ee: M(TP[ee], XF, ee, 1) for ee in range(4)])
    soft("fb")
    TQ = [XF, XF + 16, XQ, WF]
    mix(cap(lambda: bp_perms(WF, Rd, 1, "Cd")), [lambda ee=ee: M(TQ[ee], XQ, ee, 0) for ee in range(2)])
    def fillC():
        if DA == 0:
            for i in range(4, 8): e(f"v_rcp_f32 v{EXR+i}, v{EXR+i}")
        e(f"v_mul_f32 v{vD}, v{W2}, v{EXR}"); e(f"v_mul_f32 v{vD+1}, v{W2+1}, v{EXR+1}")
        for i in range(2, 8): e(f"v_fmac_f32 v{vD+(i&1)}, v{W2+i}, v{EXR+i}")
        final_pre()
    mix(cap(fillC), [lambda ee=ee: M(TQ[ee], XQ, ee, 1) for ee in range(2)])
    soft("m1")
    def fmas(ee, pk):
        if pk:
            for p in range(0, 12, 2): e(f"v_pk_fma_f32 {v2(TP[ee]+p)}, {v2(AV+p)}, {v2(TQ[ee]+p)}, {v2(TP[ee]+p)}")
        else:
            for p in range(12): e(f"v_fmac_f32 v{TP[ee]+p}, v{AV+p}, v{TQ[ee]+p}")
        e(f"v_fmac_f32 v{TP[ee]+12}, v{AV+12}, v{TQ[ee]+12}")
    def cvts(pr):
        for p in range(13): e(f"v_cvt_pk_bf16_f32 v{TP[2*pr]+p}, v{TP[2*pr]+p}, v{TP[2*pr+1]+p}")
    def dots(pr):
        for p in range(13): e(f"v_dot2c_f32_bf16 v{vD+(p&1)}, v{TP[2*pr]+p}, v{Y+2*p+pr}")
    mix(cap(lambda: (fmas(0, False), fmas(1, False))),
        [lambda: M(TQ[2], XQ, 2, 0), lambda: M(TQ[2], XQ, 2, 1), lambda: M(TQ[3], XQ, 3, 0), lambda: M(TQ[3], XQ, 3, 1)])
    soft("m2")
    cvts(0); dots(0)
    fmas(2, True); fmas(3, True); cvts(1); dots(1)
    soft("e1")
    e(f"v_add_f32 v{vD}, v{vD}, v{vD+1}")
    e(f"ds_write_b32 v{aRD}, v{vD}", "rw")

def final_pre():
    e(f"v_lshlrev_b32 v{aXr1}, 4, v{vL}")
    e(f"v_lshlrev_b32 v{aI}, 5, v{vL}"); e(f"v_add_u32 v{aI}, {RED}, v{aI}")
    e(f"s_and_b32 s{sT0}, s{sCG}, 1"); e(f"s_lshl_b32 s{sT0}, s{sT0}, 4")
    e(f"s_cmp_lt_u32 s{sCG}, 2"); e(f"s_cselect_b32 s{sT1}, -1, 0"); e(f"s_cselect_b32 s{sT2}, 0, -1")
    e(f"s_lshl_b32 s{sKAP}, s{sRG}, 10")
    e(f"s_mov_b32 s{sBND}, 0x40000")

def final():
    t = [T + i for i in range(16)]
    fin = "L_flush" if STAMPS else "L_end"
    em.wlg("*")
    em.bar(["rw"])
    stamp("t4")
    e(f"s_cmp_lg_u32 s{sW}, 0"); em.br("s_cbranch_scc1", fin, lambda c: c[0] != 0)
    for q in range(2): e(f"ds_read_b128 {vr(t[4*q],4)}, v{aI} offset:{16*q}", "rr")
    em.wvm("fl")
    em.lab("L_spin")
    e(f"v_readfirstlane_b32 s{sM0}, v{JK}")
    e(f"s_cmp_eq_u32 s{sM0}, 1")
    em.br("s_cbranch_scc1", "L_go", lambda c: True)
    e("s_sleep 2")
    e(f"s_lshl_b32 s{sM0}, s{sRG}, 2")
    e(f"buffer_load_dword v{JK}, v0, {srd(S_DBG)}, s{sM0} offen sc0 sc1")
    e("s_waitcnt vmcnt(0)")
    e(f"s_sub_u32 s{sBND}, s{sBND}, 1")
    e("s_cbranch_scc0 L_spin")
    em.lab("L_go")
    em.wlg("rr")
    for i in (0, 2): e(f"v_pk_add_f32 {v2(t[i])}, {v2(t[i])}, {v2(t[4+i])}")
    e(f"v_pk_add_f32 {v2(t[0])}, {v2(t[0])}, {v2(t[2])}")
    e(f"v_add_f32 v{t[0]}, v{t[0]}, v{t[1]}")
    e(f"v_bfe_u32 v{t[2]}, v{t[0]}, 1, 16"); e(f"v_lshrrev_b32 v{t[1]}, 16, v{t[0]}")
    e(f"v_or_b32 v{t[2]}, 1, v{t[2]}"); e(f"v_or_b32 v{t[1]}, 1, v{t[1]}")
    e(f"v_lshlrev_b32 v{t[2]}, s{sT0}, v{t[2]}"); e(f"v_lshlrev_b32 v{t[1]}, s{sT0}, v{t[1]}")
    Hh, Ll, Ho, Lo = t[4], t[6], t[8], t[10]
    e(f"v_and_b32 v{Lo}, s{sT1}, v{t[2]}"); e(f"v_and_b32 v{Lo+1}, s{sT2}, v{t[2]}")
    e(f"buffer_atomic_or_x2 {vr(Lo,2)}, v{aXr1}, {srd(S_WS)}, s{sKAP} offen offset:8 sc0 sc1", "at")
    e(f"v_and_b32 v{Ho}, s{sT1}, v{t[1]}"); e(f"v_and_b32 v{Ho+1}, s{sT2}, v{t[1]}")
    e(f"buffer_atomic_or_x2 {vr(Ho,2)}, v{aXr1}, {srd(S_WS)}, s{sKAP} offen sc0 sc1", "at")
    e(f"v_and_b32 v{Ll}, s{sT1}, v{t[2]}"); e(f"v_and_b32 v{Ll+1}, s{sT2}, v{t[2]}")
    e(f"v_and_b32 v{Hh}, s{sT1}, v{t[1]}"); e(f"v_and_b32 v{Hh+1}, s{sT2}, v{t[1]}")
    e(f"s_mov_b32 s{sT0}, 0x00010001")
    e(f"v_lshlrev_b32 v{aXr}, 1, v{vL}")
    e(f"s_lshl_b32 s{sT1}, s{sRG}, 7")
    em.wvm("at")
    for i in range(2): e(f"v_or_b32 v{Ho+i}, v{Ho+i}, v{Hh+i}")
    e(f"v_and_b32 v{t[0]}, v{Ho}, v{Ho+1}"); e(f"v_and_b32 v{t[0]}, s{sT0}, v{t[0]}")
    e(f"v_cmp_eq_u32 vcc, s{sT0}, v{t[0]}")
    for i in range(2): e(f"v_or_b32 v{Lo+i}, v{Lo+i}, v{Ll+i}")
    e(f"s_and_b64 exec, exec, vcc")
    em.br("s_cbranch_execz", fin, lambda c: False)
    em.lab("L_lchk")
    e(f"v_and_b32 v{t[0]}, v{Lo}, v{Lo+1}"); e(f"v_and_b32 v{t[0]}, s{sT0}, v{t[0]}")
    e(f"v_cmp_ne_u32 vcc, s{sT0}, v{t[0]}")
    for i in range(2):
        e(f"v_lshlrev_b32 v{t[0+2*i]}, 16, v{Ho+i}")
        e(f"v_and_b32 v{t[1+2*i]}, 0xfffe0000, v{Ho+i}")
        e(f"v_and_b32 v{t[0+2*i]}, 0xfffe0000, v{t[0+2*i]}")
    em.br("s_cbranch_vccz", "L_sum", lambda c: True)
    e(f"buffer_load_dwordx2 {vr(Lo,2)}, v{aXr1}, {srd(S_WS)}, s{sKAP} offen offset:8 sc0 sc1")
    e("s_waitcnt vmcnt(0)")
    e(f"s_sub_u32 s{sBND}, s{sBND}, 1")
    e("s_cbranch_scc0 L_lchk")
    em.lab("L_sum")
    for i in range(2):
        e(f"v_and_b32 v{t[4+2*i]}, 0xfffe, v{Lo+i}")
        e(f"v_lshrrev_b32 v{t[5+2*i]}, 17, v{Lo+i}")
    for i in range(4): e(f"v_lshl_or_b32 v{t[i]}, v{t[4+i]}, {1 + (i & 1)}, v{t[i]}")
    e(f"v_pk_add_f32 {v2(t[0])}, {v2(t[0])}, {v2(t[2])}")
    e(f"v_add_f32 v{t[0]}, v{t[0]}, v{t[1]}")
    e(f"v_cvt_pk_bf16_f32 v{t[0]}, v{t[0]}, v{t[0]}")
    e(f"buffer_store_short v{t[0]}, v{aXr}, {srd(S_OUT)}, s{sT1} offen")
    if STAMPS:
        em.lab("L_flush")
        e("s_waitcnt vmcnt(0)")
        e("s_memtime s[4:5]"); e("s_memrealtime s[6:7]"); e("s_waitcnt lgkmcnt(0)")
        e(f"s_lshl_b32 s8, s2, 4"); e(f"s_add_u32 s8, s8, s{sW}"); e("s_lshl_b32 s8, s8, 7"); e("s_add_u32 s8, s8, 0x100000")
        e("s_mov_b64 exec, 1"); e("v_mov_b32 v3, 0")
        for k in range(len(SN)):
            e(f"v_mov_b32 v4, s{sreg(k)}")
            e(f"buffer_store_dword v4, v3, {srd(S_WS)}, s8 offen offset:{4*k}"); e("s_nop 2")
        e("v_mov_b32 v4, s4"); e(f"buffer_store_dword v4, v3, {srd(S_WS)}, s8 offen offset:{4*len(SN)}"); e("s_nop 2")
        SN.append("end")
        e("v_mov_b32 v4, s100"); e(f"buffer_store_dword v4, v3, {srd(S_WS)}, s8 offen offset:124"); e("s_nop 2")
        e("v_mov_b32 v4, s6"); e(f"buffer_store_dword v4, v3, {srd(S_WS)}, s8 offen offset:120")
        e("s_waitcnt vmcnt(0)")

ZCG = 2
def main():
    prologue()
    e(f"s_cmp_eq_u32 s{sKAP}, 1"); em.br("s_cbranch_scc1", "L_k1", lambda c: kap(c) == 1)
    global DEF
    DEF = deferred() if "nodef" not in OPT else []
    for p in range(13): step(p, 0)
    em.jmp("L_tail")
    em.lab("L_k1")
    DEF = deferred() if "nodef" not in OPT else []
    for p in range(13): step(p, 1)
    em.lab("L_tail")
    with em.capture() as TC: tail()
    if "prio" in OPT:
        segs = [[]]
        for x in TC.lines:
            segs[-1].append(x)
            if x.kind == "bar": segs.append([])
        for sg in segs:
            n = len(sg); marks = {0: 3, n // 4: 2, n // 2: 1, 3 * n // 4: 0}
            for i, x in enumerate(sg):
                if i in marks: e(f"s_setprio {marks[i]}")
                em.L.append(x)
    else: put(TC.lines)
    final()
    em.lab("L_end")
    e("s_endpgm")
    ctxs = [(w, cg) for cg in range(4) for w in range(8)]
    L, nfix = resolve(em.L, ctxs, verbose=bool(os.environ.get("V")))
    out = ["; Kernarg: in0 idx, in1 table, in2 se_w1, in3 se_w2, in4 w_bi, in5 w_cross, in6 w_deep1, in7 w_deep2, out, debug, ws",
           "; generated by gen/g10.py -- 256 WGs (64 row groups x 4 column groups) x 8 waves",
           f"; @launch grid=(256,1,1) block=(512,1,1) lds={LDS_TOTAL}"]
    if STAMPS: out.append("; STAMPS: " + " ".join(SN))
    out += ['.amdgcn_target "amdgcn-amd-amdhsa--gfx950"', ".text", f".globl {KN}", ".p2align 8", f".type {KN},@function", f"{KN}:"]
    body = "\n".join(render(L))
    def sub(nbytes):
        nlq = (nbytes // 128 + 4) // 4
        return body.replace("NLQ*128", str(nlq * 128)).replace("NLQ", str(nlq)).replace("NLMAX", str(nbytes - 64))
    import subprocess
    open("_sz.s", "w").write('.amdgcn_target "amdgcn-amd-amdhsa--gfx950"\n.text\n' + sub(20480) + "\n")
    subprocess.run(["clang", "-x", "assembler", "-target", "amdgcn-amd-amdhsa", "-mcpu=gfx950", "-c", "_sz.s", "-o", "_sz.o"], check=True)
    r = subprocess.run("llvm-readelf -S _sz.o | grep ' .text'", shell=True, capture_output=True, text=True)
    f = r.stdout.split(); nbytes = int(f[f.index("PROGBITS") + 3], 16); print("code bytes", nbytes)
    out.append(sub(nbytes))
    out += ['.section .rodata,"a"', ".p2align 6", f".amdhsa_kernel {KN}", "  .amdhsa_next_free_vgpr 256", "  .amdhsa_next_free_sgpr 102",
            "  .amdhsa_accum_offset 256", "  .amdhsa_group_segment_fixed_size 0", "  .amdhsa_kernarg_size 88", "  .amdhsa_user_sgpr_count 2",
            "  .amdhsa_user_sgpr_kernarg_segment_ptr 1", "  .amdhsa_system_sgpr_workgroup_id_x 1", ".end_amdhsa_kernel"]
    open(sys.argv[1], "w").write("\n".join(out) + "\n")
    print("nops inserted:", nfix, "instr:", sum(1 for x in L if x.kind in ("i", "br", "bar")))
main()
```

```python
import sys, os, struct, math
sys.path.insert(0, os.path.dirname(os.path.abspath(__file__)))
from asmlib import *

STAMPS = int(os.environ.get("STAMPS", "0"))
OPT = os.environ.get("OPT", "nodef,pr1,prio,k0a,at1").split(",")
STP = eval(os.environ.get("STP", "(0, 1, 4, 12)"))
KN = "standalone__deep_cross_fibinet__recsys_kernel"
EB, WB, FX = 0, 65536, 131072
IDXB = FX + 24576; SMB = FX; CONB = FX + 8192
SW1, SW2, W2B = SMB + 2048, SMB + 3072, SMB + 4096
PIM = FX
XB0 = EB + 16384
XB1 = WB + 32768
EXB = EB + 49152; ZB = FX + 26624
AB = WB + 16384; RED = XB0
LDS_TOTAL = 163840
S_IDX, S_TAB, S_WC, S_W1, S_TMP, S_OUT, S_DBG, S_WS = 28, 32, 36, 40, 44, 48, 52, 56
sO = [28, 29, 30, 31]
sWo, sWd, sXM = 60, 61, 11
sW, sRG, sCG, sM0, sKAP, sT0, sT1, sT2 = 86, 87, 88, 89, 90, 91, 92, 93
sLO, sHI, sSGN, sF0N = 94, 95, 96, 97
sCLS, sBND = 27, 3
sU0, sU1, sU2 = 8, 9, 10
def srd(b): return f"s[{b}:{b+3}]"
vL = 1
vW1, vSW, aXr, aC, JK, vWC = 2, 3, 4, 5, 6, 7
aE = [8, 9, 10, 11]; aW, aY, aZw, aXw = 12, 13, 14, 15
G = [16, 17, 18, 19]
A1, A2, aI, aXr1 = 20, 24, 26, 27
aC2 = vWC
ACC = 28; AF = 44; BF = 60; XD = 76; WBI = 100
Y = 116; vC = 142; XF = 144; WFP = 176; WFQ = 208; T = 240
XP = XF; ZP = WFQ; zsv = WFQ + 5; A2B = WFQ + 6; W2R = WFQ + 8
TP = [AF, AF + 16, AF + 32, AF + 48]
SP = AF + 64
def vr(b, n): return f"v[{b}:{b+n-1}]"
def v2(b): return f"v[{b}:{b+1}]"
def fb(x): return "0x%08x" % struct.unpack("<I", struct.pack("<f", x))[0]
C0 = -2.0 * math.sqrt(2.0 / math.pi) * math.log2(math.e)
C1 = C0 * 0.044715

em = Em(); e = em.e
kap = lambda c: ((c[0] >> 1) + (c[0] >> 2)) & 1
uid = [0]
def U(p): uid[0] += 1; return f"L_{p}{uid[0]}"
def put(ls):
    for x in ls: em.L.append(x)

SN = ["start"]
def sreg(k): return 98 if k == 0 else 62 + 2*k
SOFT = os.environ.get("SOFT", "").split()
HARD = os.environ.get("HARD", "*").split()
def soft(name):
    if not STAMPS or name not in SOFT: return
    if name not in SN: SN.append(name)
    k = SN.index(name)
    assert k <= 11
    e(f"s_memtime s[{sreg(k)}:{sreg(k)+1}]")
def stamp(name):
    if not STAMPS: return
    if "*" not in HARD and name not in HARD: return
    if name not in SN: SN.append(name)
    k = SN.index(name)
    assert k <= 11
    e(f"s_memtime s[{sreg(k)}:{sreg(k)+1}]")
    e("s_waitcnt lgkmcnt(0)")

def mf32(d, a, b, c=None):
    e(f"v_mfma_f32_32x32x16_bf16 {vr(d,16)}, {vr(a,4)}, {vr(b,4)}, {'0' if c is None else vr(c,16)}")

def vfield(dst, k, tmp):
    e(f"v_mul_i32_i24 v{dst}, s{sSGN}, v{k}")
    e(f"v_add_u32 v{dst}, s{sF0N}, v{dst}")
    for _ in range(2):
        e(f"v_subrev_u32 v{tmp}, 26, v{dst}")
        e(f"v_min_u32 v{dst}, v{dst}, v{tmp}")

def slot_off(k): return ((k >> 1) & 3) * 16384 + (k & 1) * 8192
def dma_E(k, voff, pre=None):
    e(f"s_add_u32 m0, s{sM0}, {EB + slot_off(k)}")
    if pre: pre()
    fl = os.environ.get("EFL", "") if k < int(os.environ.get("EFN", "26")) else ""
    e(f"buffer_load_dwordx4 v{voff}, {srd(S_TAB)}, 0 offen {fl} lds", f"E{k}")
def dma_W(k):
    e(f"s_add_u32 m0, s{sM0}, {WB + slot_off(k)}")
    if k:
        e(f"s_add_u32 s{sWo}, s{sWo}, s{sWd}"); e(f"s_sub_u32 s{sT2}, s{sWo}, {26*32768}"); e(f"s_min_u32 s{sWo}, s{sWo}, s{sT2}")
    e(f"buffer_load_dwordx4 v{vW1}, {srd(S_W1)}, s{sWo} offen lds", f"W{k}")
def idx_fin(reg): e(f"v_lshl_add_u32 v{reg}, v{reg}, 7, v{vSW}")

def wc_setup(t):
    e(f"s_mul_i32 s{sO[0]}, s{sW}, s{sSGN}"); e(f"s_add_u32 s{sO[0]}, s{sO[0]}, s{sF0N}")
    e(f"v_lshrrev_b32 v{t[0]}, 4, v{vL}")
    for _ in range(2):
        e(f"s_sub_u32 s{sT2}, s{sO[0]}, 26"); e(f"s_min_u32 s{sO[0]}, s{sO[0]}, s{sT2}")
    e(f"v_bfe_u32 v{t[1]}, v{vL}, 1, 2")
    e(f"s_mul_i32 s{sO[0]}, s{sO[0]}, 3328")
    e(f"v_lshl_add_u32 v{t[1]}, v{t[0]}, 2, v{t[1]}")
    e(f"s_cmp_eq_u32 s{sSGN}, 1"); e(f"s_cselect_b32 s{sT1}, 8, 18"); e(f"s_mul_i32 s{sT1}, s{sT1}, 3328")
    e(f"v_bfe_u32 v{t[2]}, v{vL}, 3, 1")
    e(f"v_lshl_add_u32 v{t[2]}, v{t[1]}, 1, v{t[2]}")
    for n in (1, 2):
        e(f"s_add_u32 s{sO[n]}, s{sO[n-1]}, s{sT1}"); e(f"s_sub_u32 s{sT2}, s{sO[n]}, {26*3328}"); e(f"s_min_u32 s{sO[n]}, s{sO[n]}, s{sT2}")
    vfield(t[3], t[2], t[4])
    e(f"s_and_b32 s{sT1}, s{sW}, 1"); e(f"s_add_u32 s{sT1}, s{sT1}, 24")
    e(f"s_mul_i32 s{sO[3]}, s{sT1}, s{sSGN}"); e(f"s_add_u32 s{sO[3]}, s{sO[3]}, s{sF0N}")
    e(f"v_xor_b32 v{t[0]}, v{t[0]}, v{vL}")
    for _ in range(2):
        e(f"s_sub_u32 s{sT2}, s{sO[3]}, 26"); e(f"s_min_u32 s{sO[3]}, s{sO[3]}, s{sT2}")
    e(f"v_and_b32 v{t[0]}, 1, v{t[0]}")
    e(f"s_lshl_b32 s{sT1}, s{sCG}, 5")
    e(f"v_lshl_add_u32 v{t[0]}, v{t[0]}, 4, s{sT1}")
    e(f"s_mul_i32 s{sO[3]}, s{sO[3]}, 3328")
    e(f"v_lshl_add_u32 v{t[0]}, v{t[3]}, 7, v{t[0]}")
    e(f"v_add_u32 v{t[1]}, 3, v{t[1]}"); e(f"v_lshrrev_b32 v{t[1]}, 4, v{t[1]}")
    e(f"v_lshl_add_u32 v{vWC}, v{t[1]}, 30, v{t[0]}")

def dma_WC(part, r):
    tag = "WQ" if part else "WP"
    if "nowc" in OPT: return
    base = (PIM + r * 8192) if not part else (EB + r * 8192 if r < 2 else WB + (r - 2) * 8192)
    l = None
    if r == 3:
        l = U("wc")
        lo = 2 * part
        e(f"s_lshr_b32 s{sT0}, s{sW}, 1"); e(f"s_cmp_lg_u32 s{sT0}, {part}")
        em.br("s_cbranch_scc1", l, lambda c: (c[0] >> 1) != part)
        base -= lo * 1024
    e(f"s_add_u32 m0, s{sM0}, {base}")
    so = sO[r]
    if part:
        e(f"s_add_u32 s{sT0}, s{so}, {26 * 3328}"); so = sT0
    e(f"buffer_load_dwordx4 v{vWC}, {srd(S_WC)}, s{so} offen lds", tag)
    if l: em.lab(l)

def bp_reads(part, R, ks, tg):
    for t in range(7 - ks):
        row = 4*t + 2*ks
        if not part: a, o = aC2, row * 1024
        elif row < 16: a, o = aC, EB + row * 1024
        else: a, o = aC2, (row - 16) * 1024
        e(f"ds_read_b64 {v2(R[t])}, v{a} offset:{o}", f"{tg}{t}")
def bp_perms(dst, R, ks, tg):
    for s in range(3):
        em.wlg(f"{tg}{2*s+1}")
        for ee in range(4):
            e(f"v_perm_b32 v{dst + ee*8 + ks*4 + s}, v{R[2*s+1] + (ee>>1)}, v{R[2*s] + (ee>>1)}, s{sHI if ee & 1 else sLO}")
    if ks == 0:
        em.wlg(f"{tg}6")
        for ee in range(4):
            if ee & 1: e(f"v_lshrrev_b32 v{dst + ee*8 + 3}, 16, v{R[6] + (ee>>1)}")
            else: e(f"v_and_b32 v{dst + ee*8 + 3}, 0xffff, v{R[6] + (ee>>1)}")

def cap(fn):
    with em.capture() as c: fn()
    return c.lines
def weave(main, side, first=0, every=3):
    out = []; side = list(side); k = 0
    for i, x in enumerate(main):
        if side and i >= first and (i - first) % every == 0:
            y = side.pop(0)
            out += y if isinstance(y, list) else [y]
        out.append(x)
    for y in side: out += y if isinstance(y, list) else [y]
    return out
def prio(lines, fr=(0, 0.25, 0.5, 0.75)):
    n = len(lines); marks = {int(f * n): 3 - i for i, f in enumerate(fr)}
    out = []
    for i, x in enumerate(lines):
        if i in marks: out.append(I(f"s_setprio {marks[i]}"))
        out.append(x)
    return out
def mix(vl, ms):
    n = len(ms); k = 0
    for i, m in enumerate(ms):
        m()
        k2 = (i + 1) * len(vl) // n
        put(vl[k:k2]); k = k2

NPRE = 4
STAG = "BPH2" in os.environ
BMASK = int(os.environ.get("BMASK", "12"))
LA3 = int(os.environ.get("LA3", "0"))
IFL = os.environ.get("IFL", "")
PH2 = os.environ.get("PH2", "E0 E1 W0 W1 E2 E3")
PH4 = os.environ.get("PH4", "W2 W3 E4 E5")
ST0 = os.environ.get("ST0", "W4 W5 E6 E7")
ST1 = os.environ.get("ST1", "W6 W7")
DEF0 = int(os.environ.get("DEF0", "2"))
iszw = lambda c: (c[1] == ZCG and c[0] == 7)
def prologue():
    t = [T + i for i in range(16)]
    e("s_cmp_ge_u32 s2, 256")
    em.br("s_cbranch_scc1", "L_end", lambda c: False)
    if STAMPS:
        e("s_memtime s[98:99]"); e("s_memrealtime s[100:101]")
    e(f"v_lshrrev_b32 v{t[2]}, 6, v0")
    e("s_load_dwordx4 s[4:7], s[0:1], 0")
    e("s_load_dwordx4 s[12:15], s[0:1], 40")
    e(f"v_readfirstlane_b32 s{sW}, v{t[2]}")
    e("s_load_dwordx4 s[20:23], s[0:1], 64")
    e("s_load_dwordx2 s[24:25], s[0:1], 80")
    e(f"s_getpc_b64 s[{sT1}:{sT2}]")
    e(f"s_bfe_u32 s{sCG}, s2, 0x20003")
    if "cgx" in OPT:
        e(f"s_xor_b32 s{sCG}, s{sCG}, 3")
    e(f"s_lshl_b32 s{sT0}, s{sW}, 2"); e(f"s_lshr_b32 s{sT0}, 0x77773244, s{sT0}"); e(f"s_and_b32 s{sT0}, s{sT0}, 15"); e(f"s_lshl_b32 s{sT0}, s{sT0}, 3")
    e(f"s_load_dwordx2 s[{S_TMP}:{S_TMP+1}], s[0:1], s{sT0}")
    e(f"s_mul_i32 s{sT0}, s{sCG}, NLQ*128")
    e(f"v_lshl_add_u32 v{t[0]}, v0, 7, s{sT0}")
    e(f"v_min_u32 v{t[0]}, NLMAX, v{t[0]}")
    e(f"v_mov_b32 v{t[1]}, s{sT2}")
    e(f"v_add_co_u32 v{t[0]}, vcc, s{sT1}, v{t[0]}")
    e(f"v_and_b32 v{vL}, 63, v0")
    e(f"s_lshl_b32 s{sM0}, s{sW}, 10")
    e(f"v_addc_co_u32 v{t[1]}, vcc, 0, v{t[1]}, vcc")
    e("v_cmp_gt_u32 vcc, NLQ, v0")
    e(f"v_and_b32 v{t[4]}, 31, v0")
    e(f"s_and_saveexec_b64 s[{sT1}:{sT2}], vcc")
    em.br("s_cbranch_execz", "L_cpf", lambda c: c[0] > 0)
    e(f"global_load_dword v{JK}, v[{t[0]}:{t[1]}], off", "cpf")
    em.lab("L_cpf")
    e("s_mov_b64 exec, -1")
    F0 = [0, 8, 16, 23]; NEG = [0, 0, 0, 0]
    if "norot" in OPT: F0 = [0, 0, 0, 0]
    if "rotpm" in OPT: F0 = [0, 13, 19, 20]; NEG = [0, 1, 1, 0]
    if os.environ.get("F0"): F0 = eval(os.environ["F0"]); NEG = eval(os.environ.get("NEG", "[0, 1, 1, 0]"))
    pk = sum((F0[c] | (NEG[c] << 6)) << (8*c) for c in range(4))
    e(f"s_lshl_b32 s{sT0}, s{sCG}, 3"); e(f"s_lshr_b32 s{sT0}, {pk}, s{sT0}")
    e(f"s_bitcmp1_b32 s{sT0}, 6")
    e(f"s_cselect_b32 s{sSGN}, -1, 1"); e(f"s_cselect_b32 s{sWd}, 25, 1"); e(f"s_cselect_b32 s{sT1}, 52, 0")
    e(f"s_and_b32 s{sT0}, s{sT0}, 31")
    e(f"s_add_u32 s{sF0N}, s{sT0}, s{sT1}")
    with em.capture() as c1:
        e(f"s_lshl_b32 s{sWo}, s{sT0}, 15"); e(f"s_lshl_b32 s{sWd}, s{sWd}, 15")
        e(f"s_lshr_b32 s{sT0}, s2, 5"); e(f"s_lshl_b32 s{sT0}, s{sT0}, 3"); e(f"s_and_b32 s{sT1}, s2, 7"); e(f"s_add_u32 s{sRG}, s{sT0}, s{sT1}")
        e(f"s_lshl_b32 s{sT0}, s{sRG}, 3"); e(f"s_add_u32 s{sT0}, s{sT0}, s{sW}"); e(f"s_mul_i32 s{sKAP}, s{sT0}, 832")
        e(f"s_mov_b32 s{S_IDX+2}, {4096*26*4}"); e(f"s_mov_b32 s{S_IDX+3}, 0x00020000")
        e(f"s_add_u32 m0, s{sM0}, {IDXB}")
    with em.capture() as c2:
        vfield(t[5], t[4], t[6])
        e(f"v_lshrrev_b32 v{t[6]}, 5, v{vL}")
        e(f"v_mul_u32_u24 v{t[6]}, 104, v{t[6]}")
        e(f"v_lshl_add_u32 v{t[6]}, v{t[5]}, 2, v{t[6]}")
    interleave(em, c1, c2)
    e("s_waitcnt lgkmcnt(0)")
    def ptr(b, p): e(f"s_mov_b32 s{b}, s{p}"); e(f"s_and_b32 s{b+1}, s{p+1}, 0xffff")
    ptr(S_IDX, 4)
    for j in range(4):
        if j: e(f"s_add_u32 m0, m0, 48")
        e(f"buffer_load_dword v{t[6]}, {srd(S_IDX)}, s{sKAP} offen offset:{208*j} {IFL} lds", "idx")
    if "noM" not in OPT:
        for b, p, sz in ((S_W1, 14, 1664*512), (S_WC, 12, 86528*2)):
            ptr(b, p); e(f"s_mov_b32 s{b+2}, {sz}"); e(f"s_mov_b32 s{b+3}, 0x00020000")
        e(f"v_min_u32 v{t[7]}, 3, v{vL}"); e(f"v_lshlrev_b32 v{t[7]}, 7, v{t[7]}")
        e(f"s_mul_i32 s{sT0}, s2, {26*128}"); e(f"s_lshl_b32 s{sT1}, s{sW}, 9"); e(f"s_add_u32 s{sT0}, s{sT0}, s{sT1}")
        e(f"buffer_load_dword v{JK}, v{t[7]}, {srd(S_W1)}, s{sT0} offen", "tch")
        e(f"s_mul_i32 s{sT0}, s2, {6*128}"); e(f"s_lshl_b32 s{sT1}, s{sW}, 7"); e(f"s_add_u32 s{sT0}, s{sT0}, s{sT1}")
        e(f"buffer_load_dword v{JK}, off, {srd(S_WC)}, s{sT0}", "tch")
    MT = int(os.environ.get("MT", "0"))
    def table_touch():
        e(f"v_min_u32 v{t[11]}, {MT-1}, v{vL}"); e(f"v_lshlrev_b32 v{t[11]}, 7, v{t[11]}")
        e(f"s_lshl_b32 s{sT0}, s2, 3"); e(f"s_add_u32 s{sT0}, s{sT0}, s{sW}"); e(f"s_mul_i32 s{sT0}, s{sT0}, {MT*128}")
        e(f"buffer_load_dword v{JK}, v{t[11]}, {srd(S_TAB)}, s{sT0} offen", "tch")
    if MT and "MTearly" in OPT:
        ptr(S_TAB, 6); e(f"s_mov_b32 s{S_TAB+2}, 12800000"); e(f"s_mov_b32 s{S_TAB+3}, 0x00020000")
        table_touch()
    if "zlate" not in OPT:
        l = U("z")
        e(f"s_lshl_b32 s{sT0}, s{sCG}, 3"); e(f"s_add_u32 s{sT0}, s{sT0}, s{sW}")
        e(f"s_cmp_lg_u32 s{sT0}, {ZCG*8+7}")
        em.br("s_cbranch_scc1", l, lambda c: not iszw(c))
        ptr(S_WS, 24); e(f"s_mov_b32 s{S_WS+2}, {1 << 28}"); e(f"s_mov_b32 s{S_WS+3}, 0x00020000")
        for i in range(4): e(f"v_mov_b32 v{XF+i}, 0")
        e(f"v_lshlrev_b32 v{XF+4}, 4, v{vL}")
        e(f"s_lshl_b32 s{sT0}, s{sRG}, 10")
        e(f"buffer_store_dwordx4 {vr(XF,4)}, v{XF+4}, {srd(S_WS)}, s{sT0} offen sc0 sc1", "zero")
        em.lab(l)
    e(f"s_and_b32 s{S_TMP+1}, s{S_TMP+1}, 0xffff")
    e(f"s_mov_b32 s{S_TMP+3}, 0x00020000")
    e(f"s_lshl_b32 s{sT0}, s{sCG}, 7")
    e(f"v_lshlrev_b32 v{t[6]}, 4, v{vL}")
    e(f"s_movk_i32 s{S_TMP+2}, 676"); e(f"s_cmp_ge_u32 s{sW}, 4"); e(f"s_cselect_b32 s{S_TMP+2}, 512, s{S_TMP+2}"); e(f"s_cselect_b32 s{sT0}, s{sT0}, 0")
    e(f"v_and_b32 v{t[8]}, 16, v{t[6]}")
    e(f"s_lshl_b32 s{sT1}, s{sW}, 12"); e(f"s_lshl_b32 s{sT2}, s{sCG}, 5"); e(f"s_add_u32 s{sT1}, s{sT1}, s{sT2}")
    e(f"v_lshrrev_b32 v{t[7]}, 1, v{vL}")
    e(f"s_cmp_lt_u32 s{sW}, 2"); e(f"s_cselect_b32 s{S_TMP+2}, 8192, s{S_TMP+2}"); e(f"s_cselect_b32 s{sT0}, s{sT1}, s{sT0}")
    e(f"s_cselect_b32 s{sT1}, 7, 5")
    e(f"s_add_u32 m0, s{sM0}, {SMB}")
    e(f"v_lshl_add_u32 v{t[7]}, v{t[7]}, s{sT1}, v{t[8]}")
    e(f"buffer_load_dwordx4 v{t[7]}, {srd(S_TMP)}, s{sT0} offen lds", "sm")
    with em.capture() as c1:
        for b, p, sz in ((S_W1, 14, 1664*512), (S_TAB, 6, 12800000), (S_WC, 12, 86528*2)):
            if b != S_TAB and "noM" not in OPT: continue
            ptr(b, p); e(f"s_mov_b32 s{b+2}, {sz}"); e(f"s_mov_b32 s{b+3}, 0x00020000")
        e(f"s_add_u32 s{sT0}, s{sM0}, {IDXB}")
    with em.capture() as c2:
        e(f"v_and_b32 v{t[5]}, 7, v{vL}")
        e(f"v_lshrrev_b32 v{t[7]}, 2, v{vL}")
        e(f"v_and_b32 v{t[7]}, 4, v{t[7]}")
        e(f"v_xor_b32 v{t[7]}, v{t[7]}, v{t[5]}")
        e(f"v_lshrrev_b32 v{t[8]}, 3, v0")
        e(f"v_lshlrev_b32 v{t[8]}, 9, v{t[8]}")
        e(f"v_lshl_add_u32 v{t[7]}, v{t[7]}, 4, v{t[8]}")
        e(f"v_mov_b32 v{t[8]}, s{sCG}")
        e(f"v_lshl_add_u32 v{vW1}, v{t[8]}, 7, v{t[7]}")
        e(f"v_bfe_u32 v{t[7]}, v0, 4, 3")
        e(f"v_xor_b32 v{t[7]}, v{t[7]}, v{t[5]}")
        e(f"v_lshlrev_b32 v{vSW}, 4, v{t[7]}")
        e(f"v_lshrrev_b32 v{t[4]}, 3, v{vL}")
    interleave(em, c1, c2)
    e(f"v_lshl_add_u32 v{aI}, v{t[4]}, 7, s{sT0}")
    if MT and "MTearly" not in OPT: table_touch()
    nW0 = int(os.environ.get("NW0", "0"))
    for k in range(nW0): dma_W(k)
    def touch_setup():
        nl = (26 - TW0)
        e(f"v_min_u32 v{t[9]}, {nl-1}, v{vL}")
        e(f"v_mad_u32_u24 v{t[9]}, v{t[2]}, {nl}, v{t[9]}")
        e(f"s_lshr_b32 s{sT0}, s2, 5"); e(f"s_mul_i32 s{sT0}, s{sT0}, {nl*8}")
        e(f"s_add_u32 s{sT1}, s{sF0N}, {TW0}"); e(f"s_lshl_b32 s{sT1}, s{sT1}, 6"); e(f"s_add_u32 s{sT0}, s{sT0}, s{sT1}")
        e(f"v_add_u32 v{t[9]}, s{sT0}, v{t[9]}")
        e(f"v_subrev_u32 v{t[11]}, 1664, v{t[9]}"); e(f"v_min_u32 v{t[9]}, v{t[9]}, v{t[11]}")
        e(f"v_lshlrev_b32 v{t[9]}, 9, v{t[9]}")
        e(f"v_lshl_add_u32 v{t[9]}, v{t[8]}, 7, v{t[9]}")
        e(f"v_min_u32 v{t[10]}, 5, v{vL}")
        e(f"v_mad_u32_u24 v{t[10]}, v{t[2]}, 6, v{t[10]}")
        e(f"v_lshlrev_b32 v{t[10]}, 7, v{t[10]}")
    TW0 = int(os.environ.get("TW0", "8"))
    if "T" in (PH2 + " " + PH4 + " " + ST0 + " " + ST1 + " " + os.environ.get("PH0", "")).split(): touch_setup()
    byclass(os.environ.get("PH0", ""), os.environ.get("BPH0", os.environ.get("PH0", "")))
    e(f"v_and_b32 v{t[7]}, 5, v0")
    e(f"v_cmp_eq_u32 s[{sT1}:{sT2}], 0, v{t[7]}")
    e(f"v_mov_b32 v{t[7]}, 0x3c80")
    e(f"v_lshlrev_b32 v{t[8]}, 2, v0")
    e(f"v_cndmask_b32 v{t[7]}, 0, v{t[7]}, s[{sT1}:{sT2}]")
    e(f"v_add_u32 v{t[8]}, {CONB}, v{t[8]}")
    e(f"ds_write_b32 v{t[8]}, v{t[7]}", "con")
    addr_setup()
    em.wvm("idx")
    stamp("idx")
    e(f"ds_read_b128 {vr(AF, 4)}, v{aI}", "I0")
    e(f"ds_read_b128 {vr(G[0], 4)}, v{aI} offset:16", "I1")
    if STAG:
        em.wlg("I0")
        for k in range(4): idx_fin(ereg(k))
        em.wlg("I1")
        for k in range(4, 8): idx_fin(ereg(k))
        byclass(PH2, os.environ.get("BPH2", PH2), False)
    else: issue(PH2)
    stamp("iss")
    em.wvm("sm")
    em.wlg("*")
    for k in range(8):
        if f"E{k}" not in PH2.split() and not STAG: idx_fin(ereg(k))
    em.bar(["sm", "con"])
    wbi_reads()
    if "nodef" in OPT:
        DD = deferred(); h_ = int(os.environ.get("SPL", 0))
        for c in DD[:h_]: put(c)
        if h_: byclass(os.environ.get("PH3", ""), os.environ.get("BPH3", os.environ.get("PH3", "")), False)
        for c in DD[h_:]: put(c)
    if "zlate" not in OPT: flag_store()
    byclass(PH4, os.environ.get("BPH4", PH4), False)
    stamp("pre")

def byclass(a, b, fin=True):
    if a == b: issue(a, fin); return
    l1, l2 = U("c"), U("c")
    e(f"s_bitcmp1_b32 {BMASK}, s{sCG}"); em.br("s_cbranch_scc1", l1, lambda c: (BMASK >> c[1]) & 1)
    issue(a, fin); em.jmp(l2); em.lab(l1); issue(b, fin); em.lab(l2)
def ereg(k): return AF + k if k < 4 else G[k - 4]
def touches():
    if "t3only" in OPT:
        l = U("t")
        e(f"s_cmp_lg_u32 s{sCG}, 3"); em.br("s_cbranch_scc1", l, lambda c: c[1] != 3)
        e(f"buffer_load_dword v{JK}, v{T+9}, {srd(S_W1)}, 0 offen", "tch")
        em.lab(l)
        return
    e(f"buffer_load_dword v{JK}, v{T+9}, {srd(S_W1)}, 0 offen", "tch")
    if "tWonly" in OPT: return
    e(f"s_lshr_b32 s{sT0}, s2, 3"); e(f"s_mul_i32 s{sT0}, s{sT0}, {43*128}")
    e(f"buffer_load_dword v{JK}, v{T+10}, {srd(S_WC)}, s{sT0} offen", "tch")
def issue(seq, fin=True):
    for it in seq.split():
        if it == "T": touches()
        elif it == "B": em.bar()
        elif it[0] == "W": dma_W(int(it[1:]))
        elif it[0] == "C": dma_WC(0, int(it[1:]))
        elif it == "L":
            e(f"v_min_u32 v{T+10}, 5, v{vL}"); e(f"v_lshlrev_b32 v{T+10}, 7, v{T+10}")
            e(f"s_lshr_b32 s{sT0}, s2, 3"); e(f"s_mul_i32 s{sT0}, s{sT0}, {43*128}"); e(f"s_mul_i32 s{sT1}, s{sW}, {6*128}"); e(f"s_add_u32 s{sT0}, s{sT0}, s{sT1}")
            e(f"buffer_load_dword v{JK}, v{T+10}, {srd(S_WC)}, s{sT0} offen", "tch")
        else:
            k = int(it[1:])
            def pre():
                em.wlg(f"I{k>>2}"); idx_fin(ereg(k))
            dma_E(k, ereg(k), pre if fin else None)

def flag_store():
    l = U("z")
    e(f"s_lshl_b32 s{sT0}, s{sCG}, 3"); e(f"s_add_u32 s{sT0}, s{sT0}, s{sW}")
    e(f"s_cmp_lg_u32 s{sT0}, {ZCG*8+7}")
    em.br("s_cbranch_scc1", l, lambda c: not iszw(c))
    em.wvm("zero")
    e(f"v_mov_b32 v{T}, 1"); e(f"v_mov_b32 v{T+1}, 0")
    e(f"s_lshl_b32 s{sT0}, s{sRG}, 2")
    e("s_mov_b64 exec, 1")
    e(f"buffer_store_dword v{T}, v{T+1}, {srd(S_DBG)}, s{sT0} offen sc0 sc1", "flag")
    e("s_mov_b64 exec, -1")
    em.lab(l)

def addr_setup():
    t = [WBI + i for i in range(16)]
    b, h, sw, row = t[0], t[1], t[2], t[3]
    e(f"s_lshr_b32 s{sT0}, s{sW}, 1"); e(f"s_lshr_b32 s{sT1}, s{sW}, 2"); e(f"s_add_u32 s{sKAP}, s{sT0}, s{sT1}"); e(f"s_and_b32 s{sKAP}, s{sKAP}, 1")
    e(f"v_and_b32 v{b}, 31, v{vL}"); e(f"v_lshrrev_b32 v{h}, 5, v{vL}")
    e(f"v_bfe_u32 v{sw}, v{vL}, 1, 3")
    e(f"s_and_b32 s{sT0}, s{sW}, 1"); e(f"s_lshl_b32 s{sT0}, s{sT0}, 5")
    e(f"v_add_u32 v{row}, s{sT0}, v{b}")
    e(f"s_lshl_b32 s{sT1}, s{sT1}, 13")
    e(f"v_lshl_add_u32 v{t[4]}, v{row}, 7, s{sT1}")
    e(f"v_xor_b32 v{t[5]}, v{h}, v{sw}")
    e(f"v_lshl_add_u32 v{aE[0]}, v{t[5]}, 4, v{t[4]}")
    for ks in range(1, 4): e(f"v_xor_b32 v{aE[ks]}, {ks << 5}, v{aE[0]}")
    e(f"v_bfe_u32 v{t[4]}, v{vL}, 2, 2")
    e(f"v_lshl_add_u32 v{t[5]}, v{h}, 3, v{t[4]}")
    e(f"s_add_u32 s{sT1}, s{sT1}, {WB}")
    e(f"v_lshl_add_u32 v{t[5]}, v{t[5]}, 7, s{sT1}")
    e(f"v_bfe_u32 v{t[6]}, v{vL}, 4, 1")
    e(f"s_lshr_b32 s{sT0}, s{sW}, 2")
    e(f"v_xor_b32 v{t[6]}, s{sT0}, v{t[6]}")
    e(f"v_bfe_u32 v{t[7]}, v{vL}, 1, 1")
    e(f"v_lshl_add_u32 v{t[6]}, v{t[6]}, 1, v{t[7]}")
    e(f"s_and_b32 s{sT0}, s{sW}, 2"); e(f"s_lshl_b32 s{sT0}, s{sT0}, 1")
    e(f"v_or_b32 v{t[6]}, s{sT0}, v{t[6]}")
    e(f"v_lshrrev_b32 v{t[7]}, 1, v{vL}"); e(f"v_and_b32 v{t[7]}, 4, v{t[7]}")
    e(f"v_xor_b32 v{t[6]}, v{t[6]}, v{t[7]}")
    e(f"v_lshl_add_u32 v{t[5]}, v{t[6]}, 4, v{t[5]}")
    e(f"v_and_b32 v{t[7]}, 1, v{vL}")
    e(f"v_lshl_add_u32 v{aW}, v{t[7]}, 3, v{t[5]}")
    e(f"s_lshl_b32 s{sT0}, s{sCG}, 1"); e(f"s_lshr_b32 s{sT1}, s{sW}, 2"); e(f"s_add_u32 s{sT0}, s{sT0}, s{sT1}")
    e(f"v_xor_b32 v{t[4]}, s{sT0}, v{sw}")
    e(f"v_lshlrev_b32 v{t[5]}, 13, v{h}")
    e(f"v_lshl_add_u32 v{t[5]}, v{row}, 7, v{t[5]}")
    e(f"v_lshl_add_u32 v{t[5]}, v{t[4]}, 4, v{t[5]}")
    e(f"s_and_b32 s{sT0}, s{sW}, 2"); e(f"s_lshl_b32 s{sT0}, s{sT0}, 2")
    e(f"v_add_u32 v{aY}, s{sT0}, v{t[5]}")
    e(f"v_and_b32 v{t[4]}, 15, v{vL}")
    e(f"v_lshlrev_b32 v{t[4]}, 3, v{t[4]}")
    e(f"v_lshl_add_u32 v{t[4]}, v{h}, 8, v{t[4]}")
    e(f"v_and_b32 v{t[5]}, 16, v{vL}")
    e(f"v_lshl_add_u32 v{t[4]}, v{t[5]}, 9, v{t[4]}")
    e(f"v_add_u32 v{XD}, {SMB}, v{t[4]}")

def wbi_reads():
    for ks in range(4):
        for uu in range(2):
            e(f"ds_read_b64_tr_b16 {vr(WBI + ks*4 + uu*2, 2)}, v{XD} offset:{(16*ks + 4*uu)*32}", "wbi")

def deferred():
    global sT0, sT1, sT2
    sv = (sT0, sT1, sT2); sT0, sT1, sT2 = sU0, sU1, sU2
    ch = []
    def chunk(fn):
        with em.capture() as c: fn()
        ch.append(c.lines)
    t = [XF + i for i in range(16)]
    u = [XF + 16 + i for i in range(16)]
    def ptr(b, p): e(f"s_mov_b32 s{b}, s{p}"); e(f"s_and_b32 s{b+1}, s{p+1}, 0xffff")
    def c_srd():
        for b, p, sz in ((S_OUT, 20, 8192), (S_DBG, 22, 256), (S_WS, 24, 1 << 28)):
            ptr(b, p); e(f"s_mov_b32 s{b+2}, {sz}"); e(f"s_mov_b32 s{b+3}, 0x00020000")
    chunk(c_srd)
    b_, h, row = t[0], t[1], t[3]
    def c_a():
        e(f"s_mov_b32 s{sLO}, 0x05040100"); e(f"s_mov_b32 s{sHI}, 0x07060302")
        e(f"v_and_b32 v{b_}, 31, v{vL}"); e(f"v_lshrrev_b32 v{h}, 5, v{vL}")
        e(f"s_and_b32 s{sT0}, s{sW}, 1"); e(f"s_lshl_b32 s{sT0}, s{sT0}, 5")
        e(f"v_add_u32 v{row}, s{sT0}, v{b_}")
        e(f"s_and_b32 s{sT0}, s{sW}, 2"); e(f"s_lshl_b32 s{sT0}, s{sT0}, 2"); e(f"s_lshr_b32 s{sT1}, s{sW}, 2")
        e(f"v_bfe_u32 v{t[4]}, v{vL}, 3, 1")
    def c_b():
        e(f"v_xor_b32 v{t[4]}, s{sT1}, v{t[4]}")
        e(f"v_lshl_add_u32 v{t[5]}, v{vL}, 5, s{sT0}")
        e(f"v_lshl_add_u32 v{aC}, v{t[4]}, 4, v{t[5]}")
        e(f"s_lshl_b32 s{sT0}, s{sKAP}, 1"); e(f"s_add_u32 s{sT0}, s{sT0}, s{sT1}")
        e(f"s_lshl_b32 s{sT1}, s{sT0}, 10"); e(f"s_add_u32 s{sT1}, s{sT1}, {ZB}")
        e(f"v_lshl_add_u32 v{aZw}, v{row}, 4, s{sT1}")
    def c_c():
        e(f"s_and_b32 s{sT1}, s{sW}, 1"); e(f"s_lshl_b32 s{sT1}, s{sT1}, 10"); e(f"s_lshr_b32 s{sT2}, s{sW}, 2"); e(f"s_lshl_b32 s{sT2}, s{sT2}, 9"); e(f"s_add_u32 s{sT2}, s{sT2}, s{sT1}")
        e(f"s_mul_i32 s{sT0}, s{sKAP}, {XB1 - XB0}"); e(f"s_add_u32 s{sT2}, s{sT2}, s{sT0}"); e(f"s_add_u32 s{sT2}, s{sT2}, {XB0}")
        e(f"v_lshl_add_u32 v{t[5]}, v{b_}, 4, s{sT2}"); e(f"v_lshl_add_u32 v{aXw}, v{h}, 13, v{t[5]}")
    def c_d():
        e(f"s_lshr_b32 s{sT0}, s{sW}, 1"); e(f"s_lshl_b32 s{sT0}, s{sT0}, 13"); e(f"s_add_u32 s{sT0}, s{sT0}, s{sT1}")
        e(f"v_lshl_add_u32 v{aXr}, v{vL}, 4, s{sT0}")
        e(f"v_add_u32 v{aXr1}, {XB1}, v{aXr}")
    def c_e():
        e(f"v_mov_b32 v{vC}, {fb(C1)}"); e(f"v_mov_b32 v{vC+1}, {fb(C0)}")
        e(f"v_mov_b32 v{ZP + 3}, 0")
        for ee in range(4): e(f"v_mov_b32 v{WFP + ee*8 + 7}, 0")
        for ee in (2, 3): e(f"v_mov_b32 v{WFQ + ee*8 + 7}, 0")
    for f in (c_a, c_b, c_c, c_d, c_e): chunk(f)
    def p_a():
        e(f"s_and_b32 s{sT0}, s{sW}, 2"); e(f"s_lshl_b32 s{sT0}, s{sT0}, 5"); e(f"s_lshr_b32 s{sT1}, s{sW}, 2"); e(f"s_lshl_b32 s{sT1}, s{sT1}, 5")
        e(f"s_add_u32 s{sT0}, s{sT0}, s{sT1}"); e(f"s_add_u32 s{sT0}, s{sT0}, {W2B}")
        e(f"v_lshrrev_b32 v{t[7]}, 5, v{vL}"); e(f"v_lshl_add_u32 v{t[7]}, v{t[7]}, 3, s{sT0}")
        for q in range(2): e(f"ds_read_b64 {v2(u[12+2*q])}, v{t[7]} offset:{16*q}", "w2")
        e(f"v_and_b32 v{t[1]}, 15, v{vL}")
        e(f"v_lshrrev_b32 v{t[3]}, 4, v{vL}")
        e(f"v_min_u32 v{t[1]}, 12, v{t[1]}")
        e(f"v_lshlrev_b32 v{t[4]}, 1, v{t[1]}")
    def p_b():
        vfield(t[5], t[4], t[6])
        e(f"v_add_u32 v{t[4]}, 1, v{t[4]}")
        vfield(t[8], t[4], t[6])
        e(f"v_mul_u32_u24 v{t[6]}, 208, v{t[3]}")
        e(f"v_add_u32 v{t[6]}, {SW2}, v{t[6]}")
        e(f"v_lshl_add_u32 v{t[5]}, v{t[5]}, 1, v{t[6]}")
        e(f"v_lshl_add_u32 v{t[8]}, v{t[8]}, 1, v{t[6]}")
    def p_c():
        for k in range(4): e(f"ds_read_u16 v{u[8+k]}, v{t[5]} offset:{52*k}", "a2")
        for k in range(4): e(f"ds_read_u16 v{t[12+k]}, v{t[8]} offset:{52*k}", "a2")
        vfield(t[2], t[3], t[6])
    def p_d():
        e(f"v_lshlrev_b32 v{t[1]}, 1, v{t[1]}")
        e(f"v_mad_u32_u24 v{t[5]}, v{t[2]}, 26, v{t[1]}")
        e(f"s_cmp_eq_u32 s{sSGN}, 1"); e(f"s_cselect_b32 s{sT0}, 4, 22"); e(f"s_mul_i32 s{sT0}, s{sT0}, 26")
        em.wlg("w2")
        for d in range(4):
            e(f"v_lshlrev_b32 v{W2R+2*d}, 16, v{u[12+d]}"); e(f"v_and_b32 v{W2R+2*d+1}, 0xffff0000, v{u[12+d]}")
    def p_k(ks):
        for k in ks:
            if k:
                e(f"v_add_u32 v{t[5]}, s{sT0}, v{t[5]}"); e(f"v_subrev_u32 v{t[6]}, 676, v{t[5]}"); e(f"v_min_u32 v{t[5]}, v{t[5]}, v{t[6]}")
            e(f"v_add_u32 v{t[9+(k&1)]}, {SW1}, v{t[5]}")
            e(f"ds_read_u16 v{u[k] if k < 6 else A1+3}, v{t[9+(k&1)]}", "a1")
    for f in (p_a, p_b, p_c, p_d, lambda: p_k([0, 1]), lambda: p_k([2, 3]), lambda: p_k([4, 5]), lambda: p_k([6])): chunk(f)
    with em.capture() as c: wc_setup(t)
    ls = c.lines
    cur = []
    for i, x in enumerate(ls):
        cur.append(x)
        if len(cur) >= 9 and not x.t.startswith("s_cmp"):
            ch.append(cur); cur = []
    if cur: ch.append(cur)
    def p_z():
        em.wlg("a2", "a1")
        for d in range(2): e(f"v_lshl_or_b32 v{A2+d}, v{u[8+2*d+1]}, 16, v{u[8+2*d]}")
        for d in range(2): e(f"v_lshl_or_b32 v{A2B+d}, v{t[12+2*d+1]}, 16, v{t[12+2*d]}")
        for d in range(3): e(f"v_lshl_or_b32 v{A1+d}, v{u[2*d+1]}, 16, v{u[2*d]}")
    chunk(p_z)
    sT0, sT1, sT2 = sv
    return ch

def zero_store():
    l = U("z")
    e(f"s_lshl_b32 s{sT0}, s{sCG}, 3"); e(f"s_add_u32 s{sT0}, s{sT0}, s{sW}")
    e(f"s_cmp_lg_u32 s{sT0}, {ZCG*8+7}")
    em.br("s_cbranch_scc1", l, lambda c: not iszw(c))
    for i in range(4): e(f"v_mov_b32 v{T+i}, 0")
    e(f"v_lshlrev_b32 v{T+4}, 4, v{vL}")
    e(f"s_lshl_b32 s{sT0}, s{sRG}, 10")
    e(f"buffer_store_dwordx4 {vr(T,4)}, v{T+4}, {srd(S_WS)}, s{sT0} offen sc0 sc1", "zero")
    em.lab(l)

def frag_reads(p, ks):
    so = (p & 3) * 16384
    e(f"ds_read_b128 {vr(BF + 4*ks, 4)}, v{aE[ks]} offset:{so}", f"F{ks}")
    for uu in range(2):
        e(f"ds_read_b64_tr_b16 {vr(AF + 4*ks + 2*uu, 2)}, v{aW} offset:{so + (16*ks + 4*uu)*128}", f"F{ks}")

def pack_v(s, single=False, part="zx"):
    if "z" in part:
        if single: e(f"v_cvt_pk_bf16_f32 v{ZP+s}, v{XD+8}, 0")
        else: e(f"v_cvt_pk_bf16_f32 v{ZP+s}, v{zsv}, v{XD+16}")
    if "x" not in part: return
    for i in range(8):
        e(f"v_cvt_pk_bf16_f32 v{XP+4*i+s}, v{XD+i}, {'0' if single else 'v%d' % (XD+8+i)}")

def xdst(p): return XD + 8 * ((p >> 1) & 1)

aEXw, aEXr, aZr, aW2, aAw, aAr, aRD = G[0], G[1], G[2], G[3], aI, vSW, vW1
def tail_addr(part, K):
    t = [T + 10 + i for i in range(4)]
    if part == 0:
        e(f"s_lshl_b32 s{sT0}, s{sW}, 11")
        e(f"v_lshl_add_u32 v{aEXw}, v{vL}, 4, s{sT0}")
        e(f"v_xor_b32 v{aEXr}, 8192, v{aEXw}")
        e(f"v_lshrrev_b32 v{t[0]}, 4, v{vL}")
        e(f"s_and_b32 s{sT1}, s{sW}, 3"); e(f"s_lshl_b32 s{sT1}, s{sT1}, 8")
        e(f"v_lshl_add_u32 v{t[0]}, v{t[0]}, 10, s{sT1}")
        e(f"v_and_b32 v{t[1]}, 15, v{vL}"); e(f"v_lshl_add_u32 v{aZr}, v{t[1]}, 4, v{t[0]}")
        e(f"v_add_u32 v{aAw}, {AB}, v{aZr}")
        e(f"v_add_u32 v{aZr}, {ZB}, v{aZr}")
    else:
        e(f"v_lshrrev_b32 v{t[0]}, 5, v{vL}"); e(f"v_and_b32 v{t[1]}, 31, v{vL}")
        e(f"s_and_b32 s{sT0}, s{sW}, 1"); e(f"s_lshl_b32 s{sT1}, s{sT0}, 9"); e(f"s_add_u32 s{sT1}, s{sT1}, {AB}")
        e(f"v_lshl_add_u32 v{t[2]}, v{t[0]}, 12, s{sT1}")
        e(f"v_lshl_add_u32 v{aAr}, v{t[1]}, 4, v{t[2]}")
        e(f"s_lshl_b32 s{sT0}, s{sT0}, 10"); e(f"s_lshr_b32 s{sT1}, s{sW}, 1"); e(f"s_lshl_b32 s{sT1}, s{sT1}, 3")
        e(f"s_add_u32 s{sT0}, s{sT0}, s{sT1}"); e(f"s_add_u32 s{sT0}, s{sT0}, {RED}")
        e(f"v_lshl_add_u32 v{t[2]}, v{t[0]}, 2, s{sT0}")
        e(f"v_lshl_add_u32 v{aRD}, v{t[1]}, 5, v{t[2]}")
        pass

def xws(n, tag):
    return cap(lambda: [e(f"ds_write_b{32*n} v{aXw}, {vr(XP + 4*i, n)} offset:{(8*(i>>2) + (i&3))*2048}", tag) for i in range(8)])

SK = int(os.environ.get("SK", "1"))
def step(p, K):
    em.cm(f"---- step {p} kap {K}")
    nop = lambda: None
    tags = [f"E{2*p}", f"E{2*p+1}", f"W{2*p}", f"W{2*p+1}"]
    if STAG and p <= 3:
        l1, l2 = U("c"), U("c")
        e(f"s_bitcmp1_b32 {BMASK}, s{sCG}"); em.br("s_cbranch_scc1", l1, lambda c: (BMASK >> c[1]) & 1)
        em.wvm(*tags); em.jmp(l2); em.lab(l1); em.wvm(*tags); em.lab(l2)
    else: em.wvm(*tags)
    if p == 12: em.wlg("*")
    em.bar(tags)
    if p in STP: stamp(f"b{p}")
    dm = []
    tp = p + 2
    if 4 <= tp <= 12:
        g = G[2*(p & 1):2*(p & 1) + 2]
        dm = [lambda: dma_E(2*tp, g[0]), lambda: dma_E(2*tp+1, g[1]), lambda: dma_W(2*tp), lambda: dma_W(2*tp+1)]
    if p <= 1:
        dm = [lambda k=k: issue(k, False) for k in (ST0, ST1)[p].split()]
        if STAG: dm = [lambda: byclass((ST0, ST1)[p], os.environ.get(("BST0", "BST1")[p], (ST0, ST1)[p]), False)]
        while len(dm) > 4:
            f1, f2 = dm[-2], dm[-1]; dm = dm[:-2] + [lambda f1=f1, f2=f2: (f1(), f2())]
    early = (PH4 + " " + ST0 + " " + ST1).split()
    if tp == 13: dm = [lambda r=r: dma_WC(0, r) for r in range(3) if f"C{r}" not in early] + [nop]
    if tp == 14: dm = [lambda: dma_WC(0, 3), nop, nop, nop]
    dm = [nop] * (4 - len(dm)) + dm
    rdi = 4 <= p + 3 <= 12
    g2 = G[2*((p+1) & 1)]
    def mm(q, ks, what="xd"):
        em.wlg(f"F{ks}", "wbi")
        if (q & 1) == K and "x" in what: mf32(xdst(q), WBI + 4*ks, BF + 4*ks, None if ks == 0 else xdst(q))
        if "d" in what: mf32(ACC, AF + 4*ks, BF + 4*ks, None if (q == 0 and ks == 0) else ACC)
    duty = (p & 1) == K
    pk = None
    if not duty and p >= 1:
        d = p - 1
        pk = (d >> 2) if (d >> 1) & 1 else -1
    def extras():
        e(f"ds_read_b64 {vr(Y + 2*p, 2)}, v{aY} offset:{(p & 3)*16384}", "cap")
        if rdi: e(f"ds_read_b64 {v2(g2)}, v{aI} offset:{8*(p+3)}", "Ig")
    slot = 0
    if p == 12 and "pr1" in OPT: e("s_setprio 3")
    frag_reads(p, 0)
    if p >= 1: mm(p - 1, 3)
    frag_reads(p, 1)
    dm[0](); slot = 1
    if p < 12:
        mm(p, 0)
        frag_reads(p, 2)
        if pk == -1: e(f"v_mov_b32 v{zsv}, v{XD+8}")
        elif pk is not None: pack_v(pk)
        dm[1]()
        if p == 11: tail_addr(0, K)
        mm(p, 1)
        frag_reads(p, 3); extras()
        dm[2]()
        if p == 11: tail_addr(1, K)
        mm(p, 2)
        dm[3]()
        if rdi:
            em.wlg("Ig"); idx_fin(g2); idx_fin(g2 + 1)
        if p == 2 and K == 0 and "zlate" in OPT: zero_store()
        if p == 5 and K == 0 and "zlate" in OPT: flag_store()
        return
    EXW = cap(lambda: [e(f"ds_write_b128 v{aEXw}, {vr(ACC + 8 + 4*qq, 4)} offset:{EXB + qq*1024}", "xw") for qq in range(2)])
    if duty:
        mm(p, 0); frag_reads(p, 2)
        mm(p, 1); frag_reads(p, 3); extras()
        mm(p, 2, "x"); mm(p, 3, "x"); mm(p, 2, "d"); mm(p, 3, "d")
        l = U("f")
        e(f"s_cmp_lg_u32 s{sW}, 0"); em.br("s_cbranch_scc1", l, lambda c: c[0] != 0)
        e(f"v_mov_b32 v0, 0"); e(f"s_lshl_b32 s{sT0}, s{sRG}, 2")
        e(f"buffer_load_dword v{JK}, v0, {srd(S_DBG)}, s{sT0} offen sc0 sc1", "fl")
        em.lab(l)
        pack_v(3, True, part="z")
        e(f"ds_write_b128 v{aZw}, {vr(ZP,4)}", "xw")
        put(weave(cap(lambda: pack_v(3, True, part="x")), EXW, 1, 3))
    else:
        XW = xws(3, "xw")
        mm(p, 0); frag_reads(p, 2); frag_reads(p, 3); extras()
        pack_v(pk)
        mm(p, 1)
        e("s_setprio 1")
        e(f"ds_write_b128 v{aZw}, {vr(ZP,4)}", "xw")
        nl = int(os.environ.get("NL", "0"))
        put(XW[:1]); mm(p, 2); put(XW[1:3]); mm(p, 3); put(XW[3:8-nl])
        put(EXW)
    soft("s3")
    em.wlg("*")
    em.bar(["xw"])
    stamp("t1")
    if "ptime" in OPT:
        em.wvm("WP"); em.bar(); stamp("p")
    alpha(K)

def alpha(K):
    t = [T + i for i in range(16)]
    EXR = ACC + 8; W2 = ACC
    with em.capture() as D1:
        for i in range(0, 8, 2): e(f"v_pk_add_f32 {v2(ACC+i)}, {v2(ACC+i)}, {v2(EXR+i)}")
        for i in range(0, 8, 2): e(f"v_pk_mul_f32 {v2(EXR+i)}, {v2(ACC+i)}, {v2(ACC+i)}")
        for i in range(0, 8, 2): e(f"v_pk_fma_f32 {v2(EXR+i)}, {v2(EXR+i)}, {v2(vC)}, {v2(vC)} op_sel:[0,0,1] op_sel_hi:[1,0,1]")
        for i in range(0, 8, 2): e(f"v_pk_mul_f32 {v2(EXR+i)}, {v2(EXR+i)}, {v2(ACC+i)}")
        for i in range(0, 8, 2): e(f"v_pk_mul_f32 {v2(W2+i)}, {v2(W2R+i)}, {v2(ACC+i)}")
    Dl = D1.lines
    DA = int(os.environ.get("DA", "0"))
    if DA >= 1: Dl = Dl + cap(lambda: [e(f"v_exp_f32 v{EXR+i}, v{EXR+i}") for i in range(8)])
    if DA >= 2:
        Dl = Dl + cap(lambda: [e(f"v_pk_add_f32 {v2(EXR+i)}, {v2(EXR+i)}, 1.0 op_sel_hi:[1,0]") for i in range(0, 8, 2)])
    EXRD = cap(lambda: [e(f"ds_read_b128 {vr(EXR + 4*q, 4)}, v{aEXr} offset:{EXB + q*1024}", "ex") for q in range(2)])
    def xr1():
        for ee in range(4):
            e(f"ds_read_b128 {vr(XF + ee*8 + 4, 4)}, v{aXr1} offset:{ee*2048}", "X1")
    XR1 = cap(xr1)
    EXP = cap(lambda: [e(f"v_exp_f32 v{EXR+i}, v{EXR+i}") for i in range(8)])
    nl = int(os.environ.get("NL", "0"))
    XL = xws(3, "aw")[8-nl:] if nl else []
    if nl: XR1 = []
    if K == 0:
        e("s_setprio 0")
        XW = xws(4, "aw")
        if "k0a" in OPT:
            dma_WC(1, 0); put(XW[:3]); dma_WC(1, 1); put(XW[3:6]); dma_WC(1, 2); put(XW[6:]); dma_WC(1, 3)
            soft("a3")
            put(EXRD)
            put(XR1[:len(XR1)//2])
            em.wlg("ex")
            put(weave(Dl, XR1[len(XR1)//2:], 2, 3))
        else:
            dma_WC(1, 0)
            put(EXRD)
            dma_WC(1, 1); put(XW[:1]); dma_WC(1, 2); put(XW[1:2]); dma_WC(1, 3)
            em.wlg("ex")
            put(weave(Dl, XW[2:], 0, 3))
            put(XR1)
        put(EXP)
        soft("a4")
        beta0([])
        return
    ZF, S1, g = t[0], AF, AF + 8
    e("s_setprio 3")
    e(f"ds_read_b128 {vr(ZF,4)}, v{aZr}", "zf")
    dma_WC(1, 0)
    e(f"s_mov_b32 s{sU1+1}, {fb(-math.log2(math.e))}"); e(f"s_mov_b32 s{sU1+2}, {fb(-math.log2(math.e))}")
    em.wlg("zf")
    e(f"v_mfma_f32_16x16x32_bf16 {vr(S1,4)}, {vr(A1,4)}, {vr(ZF,4)}, 0")
    if "exl" not in OPT: put(EXRD)
    dma_WC(1, 1)
    soft("a0")
    pk_gelu(S1, g, 4)
    for i in (0, 2): e(f"v_pk_mul_f32 {v2(g+i)}, {v2(g+i)}, {v2(S1+i)}")
    for d in range(2): e(f"v_cvt_pk_bf16_f32 v{ZF+d}, v{g+2*d}, v{g+2*d+1}")
    soft("a1")
    dma_WC(1, 2)
    e(f"v_mfma_f32_16x16x16_bf16 {vr(S1,4)}, {vr(A2,2)}, {vr(ZF,2)}, 0")
    e(f"v_mfma_f32_16x16x16_bf16 {vr(S1+4,4)}, {vr(A2B,2)}, {vr(ZF,2)}, 0")
    dma_WC(1, 3)
    if "exl" not in OPT:
        em.wlg("ex")
        put(Dl[:4]); Dl = Dl[4:]
    for i in range(0, 8, 2): e(f"v_pk_mul_f32 {v2(g+i)}, {v2(S1+i)}, s[{sU1+1}:{sU1+2}]")
    for r in range(8): e(f"v_exp_f32 v{g+r}, v{g+r}")
    if "exl" in OPT: put(EXRD)
    for i in range(0, 8, 2): e(f"v_pk_add_f32 {v2(g+i)}, {v2(g+i)}, 1.0 op_sel_hi:[1,0]")
    for hf in range(2):
        for r in range(4): e(f"v_rcp_f32 v{g+4*hf+r}, v{g+4*hf+r}")
    for hf in range(2):
        P_ = t[4*hf]; gg = g + 4*hf
        for d in range(2): e(f"v_cvt_pk_bf16_f32 v{P_+d}, v{gg+2*d}, v{gg+2*d+1}")
        e(f"v_and_b32 v{P_+2}, 0xffff, v{P_}")
        e(f"v_lshrrev_b32 v{P_+3}, 16, v{P_}")
        e(f"ds_write_b64 v{aAw}, {v2(P_+2)} offset:{8192 + hf*4096}", "aw")
        for d in range(2):
            e(f"v_lshlrev_b32 v{gg+2*d}, 16, v{P_+d}")
            e(f"v_and_b32 v{gg+2*d+1}, 0xffff0000, v{P_+d}")
        e(f"ds_write_b128 v{aAw}, {vr(gg,4)} offset:{hf*4096}", "aw")
    soft("a3")
    nb = int(os.environ.get("NB", "4"))
    put(weave(Dl[:nb], XR1, 0, 1))
    soft("a4")
    beta0(Dl[nb:] + EXP)

def beta0(V):
    AV = aE[0]; ALo = SP
    em.wvm("WP")
    em.wlg("aw")
    em.bar(["aw", "WP"])
    stamp("t2")
    e("s_setprio 3")
    AR = []
    for q in range(4):
        AR += cap(lambda: e(f"ds_read_b64 {v2(ALo + 2*q)}, v{aAr} offset:{8192 + q*1024}", f"a{q}"))
        AR += cap(lambda: e(f"ds_read_b128 {vr(AV + 4*q, 4)}, v{aAr} offset:{q*1024}", f"a{q}"))
    V = V + cap(lambda: e(f"v_add_u32 v{aC2}, {PIM}, v{aC}"))
    put(weave(V, AR, 0, 3))
    soft("p0")

def pk_gelu(x, t, n):
    for i in range(0, n, 2): e(f"v_pk_mul_f32 {v2(t+i)}, {v2(x+i)}, {v2(x+i)}")
    for i in range(0, n, 2): e(f"v_pk_fma_f32 {v2(t+i)}, {v2(t+i)}, {v2(vC)}, {v2(vC)} op_sel:[0,0,1] op_sel_hi:[1,0,1]")
    for i in range(0, n, 2): e(f"v_pk_mul_f32 {v2(t+i)}, {v2(t+i)}, {v2(x+i)}")
    for i in range(n): e(f"v_exp_f32 v{t+i}, v{t+i}")
    for i in range(0, n, 2): e(f"v_pk_add_f32 {v2(t+i)}, {v2(t+i)}, 1.0 op_sel_hi:[1,0]")
    for i in range(n): e(f"v_rcp_f32 v{t+i}, v{t+i}")

def tail():
    t = [T + i for i in range(16)]
    EXR = ACC + 8; W2 = ACC; vD = A2
    WF = WFP; XQ = WFQ
    DA = int(os.environ.get("DA", "0"))
    AV = aE[0]; ALo = SP
    Ra = [TP[0] + 2*i for i in range(7)]
    Rb = [T + 2*i for i in range(6)]
    Rc = [ALo, ALo + 2, ALo + 4, ALo + 6, T + 12, T + 14, vC]
    Rd = Rb
    UT = [[TP[1] + i for i in range(13)], [TP[2] + i for i in range(13)]]
    def M(dst, xf, ee, ks): mf32(dst, WF + ee*8 + 4*ks, xf + ee*8 + 4*ks, None if ks == 0 else dst)
    XR0 = cap(lambda: [e(f"ds_read_b128 {vr(XF + ee*8, 4)}, v{aXr} offset:{XB0 + ee*2048}", f"X0{ee}") for ee in range(4)])
    NL = 0
    def sdots(ee, ks):
        u = UT[ee & 1]
        em.wlg(f"X0{ee}" if ks == 0 else "X1")
        for s in range(4 - ks):
            em.wlg(f"a{s}")
            x = XF + ee*8 + ks*4 + s
            e(f"v_dot2_f32_bf16 v{u[4*s+2*ks]}, v{x}, v{ALo+2*s+ks}, 0")
            if s < 3: e(f"v_dot2_f32_bf16 v{u[4*s+2*ks+1]}, v{x}, v{AV+4*s+2+ks}, 0")
    def scvt(ee):
        u = UT[ee & 1]
        for ks in (1, 0):
            for s in range(4 - ks):
                e(f"v_cvt_pk_bf16_f32 v{XQ + ee*8 + ks*4 + s}, v{u[4*s+2*ks]}, {'v%d' % u[4*s+2*ks+1] if s < 3 else '0'}")
    def scale():
        for pr in range(2):
            for ks in (1, 0):
                for j in range(2): sdots(2*pr + j, ks)
            for j in range(2): scvt(2*pr + j)
    PR = cap(lambda: (bp_reads(0, Ra, 0, "Ca"), bp_reads(0, Rb, 1, "Cb")))
    if NL: XR0 = XR0[:2] + XR1b[2:] + XR0[2:]
    put(weave(cap(scale), XR0 + PR, 0, int(os.environ.get("EV1", "4"))))
    e(f"v_add_u32 v{aC2}, {WB}, v{aC}")
    soft("d2")
    em.wvm("WQ")
    em.bar(["WQ"])
    stamp("t3")
    put(weave(cap(lambda: bp_perms(WF, Ra, 0, "Ca")), cap(lambda: bp_reads(1, Rc, 0, "Cc")), 0, 3))
    def fillA():
        bp_perms(WF, Rb, 1, "Cb")
    def fillA2():
        if DA == 0:
            for i in range(8): e(f"v_add_f32 v{EXR+i}, 1.0, v{EXR+i}")
        else:
            for i in range(4, 8): e(f"v_rcp_f32 v{EXR+i}, v{EXR+i}")
    mix(cap(fillA) + weave(cap(fillA2), cap(lambda: bp_reads(1, Rd, 1, "Cd"))[:3], 0, 3), [lambda ee=ee: M(TP[ee], XF, ee, 0) for ee in range(4)])
    soft("fa")
    def fillB():
        bp_perms(WF, Rc, 0, "Cc")
        if DA == 0:
            for i in range(4): e(f"v_rcp_f32 v{EXR+i}, v{EXR+i}")
    mix(weave(cap(fillB), cap(lambda: bp_reads(1, Rd, 1, "Cd"))[3:], 1, 4), [lambda ee=ee: M(TP[ee], XF, ee, 1) for ee in range(4)])
    soft("fb")
    TQ = [XF, XF + 16, XQ, WF]
    mix(cap(lambda: bp_perms(WF, Rd, 1, "Cd")), [lambda ee=ee: M(TQ[ee], XQ, ee, 0) for ee in range(2)])
    def fillC():
        if DA == 0:
            for i in range(4, 8): e(f"v_rcp_f32 v{EXR+i}, v{EXR+i}")
        e(f"v_mul_f32 v{vD}, v{W2}, v{EXR}"); e(f"v_mul_f32 v{vD+1}, v{W2+1}, v{EXR+1}")
        for i in range(2, 8): e(f"v_fmac_f32 v{vD+(i&1)}, v{W2+i}, v{EXR+i}")
        final_pre()
    mix(cap(fillC), [lambda ee=ee: M(TQ[ee], XQ, ee, 1) for ee in range(2)])
    soft("m1")
    def fmas(ee, pk):
        if pk:
            for p in range(0, 12, 2): e(f"v_pk_fma_f32 {v2(TP[ee]+p)}, {v2(AV+p)}, {v2(TQ[ee]+p)}, {v2(TP[ee]+p)}")
        else:
            for p in range(12): e(f"v_fmac_f32 v{TP[ee]+p}, v{AV+p}, v{TQ[ee]+p}")
        e(f"v_fmac_f32 v{TP[ee]+12}, v{AV+12}, v{TQ[ee]+12}")
    def cvts(pr):
        for p in range(13): e(f"v_cvt_pk_bf16_f32 v{TP[2*pr]+p}, v{TP[2*pr]+p}, v{TP[2*pr+1]+p}")
    def dots(pr):
        for p in range(13): e(f"v_dot2c_f32_bf16 v{vD+(p&1)}, v{TP[2*pr]+p}, v{Y+2*p+pr}")
    mix(cap(lambda: (fmas(0, False), fmas(1, False))),
        [lambda: M(TQ[2], XQ, 2, 0), lambda: M(TQ[2], XQ, 2, 1), lambda: M(TQ[3], XQ, 3, 0), lambda: M(TQ[3], XQ, 3, 1)])
    soft("m2")
    cvts(0); dots(0)
    fmas(2, True); fmas(3, True); cvts(1); dots(1)
    soft("e1")
    e(f"v_add_f32 v{vD}, v{vD}, v{vD+1}")
    e(f"ds_write_b32 v{aRD}, v{vD}", "rw")

def final_pre():
    e(f"v_lshlrev_b32 v{aXr1}, 3, v{vL}")
    e(f"v_lshlrev_b32 v{aI}, 5, v{vL}"); e(f"v_add_u32 v{aI}, {RED}, v{aI}")
    e(f"s_and_b32 s{sT0}, s{sCG}, 1"); e(f"s_lshl_b32 s{sT0}, s{sT0}, 4")
    e(f"s_cmp_lt_u32 s{sCG}, 2"); e(f"s_cselect_b32 s{sT1}, -1, 0"); e(f"s_cselect_b32 s{sT2}, 0, -1")
    e(f"s_lshl_b32 s{sKAP}, s{sRG}, 10")
    e(f"s_mov_b32 s{sBND}, 0x40000")

def final():
    t = [T + i for i in range(16)]
    fin = "L_flush" if STAMPS else "L_end"
    em.wlg("*")
    em.bar(["rw"])
    stamp("t4")
    e(f"s_cmp_lg_u32 s{sW}, 0"); em.br("s_cbranch_scc1", fin, lambda c: c[0] != 0)
    for q in range(2): e(f"ds_read_b128 {vr(t[4*q],4)}, v{aI} offset:{16*q}", "rr")
    em.wvm("fl")
    em.lab("L_spin")
    e(f"v_readfirstlane_b32 s{sM0}, v{JK}")
    e(f"s_cmp_eq_u32 s{sM0}, 1")
    em.br("s_cbranch_scc1", "L_go", lambda c: True)
    e("s_sleep 2")
    e(f"s_lshl_b32 s{sM0}, s{sRG}, 2")
    e(f"buffer_load_dword v{JK}, v0, {srd(S_DBG)}, s{sM0} offen sc0 sc1")
    e("s_waitcnt vmcnt(0)")
    e(f"s_sub_u32 s{sBND}, s{sBND}, 1")
    e("s_cbranch_scc0 L_spin")
    em.lab("L_go")
    em.wlg("rr")
    for i in (0, 2): e(f"v_pk_add_f32 {v2(t[i])}, {v2(t[i])}, {v2(t[4+i])}")
    e(f"v_pk_add_f32 {v2(t[0])}, {v2(t[0])}, {v2(t[2])}")
    e(f"v_add_f32 v{t[0]}, v{t[0]}, v{t[1]}")
    if "at1" in OPT:
        Hh, Ho = t[4], t[8]
        e(f"v_cvt_pk_bf16_f32 v{t[1]}, v{t[0]}, 0")
        e(f"v_cmp_eq_u32 vcc, 0, v{t[1]}")
        e(f"v_mov_b32 v{t[2]}, 0x8000")
        e(f"v_lshlrev_b32 v{aXr}, 1, v{vL}")
        e(f"v_cndmask_b32 v{t[1]}, v{t[1]}, v{t[2]}, vcc")
        e(f"v_lshlrev_b32 v{t[1]}, s{sT0}, v{t[1]}")
        e(f"v_and_b32 v{Ho}, s{sT1}, v{t[1]}"); e(f"v_and_b32 v{Ho+1}, s{sT2}, v{t[1]}")
        e(f"buffer_atomic_or_x2 {vr(Ho,2)}, v{aXr1}, {srd(S_WS)}, s{sKAP} offen sc0 sc1", "at")
        e(f"v_and_b32 v{Hh}, s{sT1}, v{t[1]}"); e(f"v_and_b32 v{Hh+1}, s{sT2}, v{t[1]}")
        e(f"s_lshl_b32 s{sT1}, s{sRG}, 7")
        em.wvm("at")
        for i in range(2): e(f"v_or_b32 v{Ho+i}, v{Ho+i}, v{Hh+i}")
        for i in range(2):
            e(f"v_lshlrev_b32 v{t[2*i]}, 16, v{Ho+i}"); e(f"v_and_b32 v{t[2*i+1]}, 0xffff0000, v{Ho+i}")
        e(f"v_min3_u32 v{t[4]}, v{t[0]}, v{t[1]}, v{t[2]}"); e(f"v_min_u32 v{t[4]}, v{t[4]}, v{t[3]}")
        e(f"v_cmp_ne_u32 vcc, 0, v{t[4]}")
        e(f"s_and_b64 exec, exec, vcc")
        em.br("s_cbranch_execz", fin, lambda c: False)
    else:
        e(f"v_bfe_u32 v{t[2]}, v{t[0]}, 1, 16"); e(f"v_lshrrev_b32 v{t[1]}, 16, v{t[0]}")
        e(f"v_or_b32 v{t[2]}, 1, v{t[2]}"); e(f"v_or_b32 v{t[1]}, 1, v{t[1]}")
        e(f"v_lshlrev_b32 v{t[2]}, s{sT0}, v{t[2]}"); e(f"v_lshlrev_b32 v{t[1]}, s{sT0}, v{t[1]}")
        Hh, Ll, Ho, Lo = t[4], t[6], t[8], t[10]
        e(f"v_and_b32 v{Lo}, s{sT1}, v{t[2]}"); e(f"v_and_b32 v{Lo+1}, s{sT2}, v{t[2]}")
        e(f"buffer_atomic_or_x2 {vr(Lo,2)}, v{aXr1}, {srd(S_WS)}, s{sKAP} offen offset:512 sc0 sc1", "at")
        e(f"v_and_b32 v{Ho}, s{sT1}, v{t[1]}"); e(f"v_and_b32 v{Ho+1}, s{sT2}, v{t[1]}")
        e(f"buffer_atomic_or_x2 {vr(Ho,2)}, v{aXr1}, {srd(S_WS)}, s{sKAP} offen sc0 sc1", "at")
        e(f"v_and_b32 v{Ll}, s{sT1}, v{t[2]}"); e(f"v_and_b32 v{Ll+1}, s{sT2}, v{t[2]}")
        e(f"v_and_b32 v{Hh}, s{sT1}, v{t[1]}"); e(f"v_and_b32 v{Hh+1}, s{sT2}, v{t[1]}")
        e(f"s_mov_b32 s{sT0}, 0x00010001")
        e(f"v_lshlrev_b32 v{aXr}, 1, v{vL}")
        e(f"s_lshl_b32 s{sT1}, s{sRG}, 7")
        em.wvm("at")
        for i in range(2): e(f"v_or_b32 v{Ho+i}, v{Ho+i}, v{Hh+i}")
        e(f"v_and_b32 v{t[0]}, v{Ho}, v{Ho+1}"); e(f"v_and_b32 v{t[0]}, s{sT0}, v{t[0]}")
        e(f"v_cmp_eq_u32 vcc, s{sT0}, v{t[0]}")
        for i in range(2): e(f"v_or_b32 v{Lo+i}, v{Lo+i}, v{Ll+i}")
        e(f"s_and_b64 exec, exec, vcc")
        em.br("s_cbranch_execz", fin, lambda c: False)
        em.lab("L_lchk")
        e(f"v_and_b32 v{t[0]}, v{Lo}, v{Lo+1}"); e(f"v_and_b32 v{t[0]}, s{sT0}, v{t[0]}")
        e(f"v_cmp_ne_u32 vcc, s{sT0}, v{t[0]}")
        for i in range(2):
            e(f"v_lshlrev_b32 v{t[0+2*i]}, 16, v{Ho+i}")
            e(f"v_and_b32 v{t[1+2*i]}, 0xfffe0000, v{Ho+i}")
            e(f"v_and_b32 v{t[0+2*i]}, 0xfffe0000, v{t[0+2*i]}")
        em.br("s_cbranch_vccz", "L_sum", lambda c: True)
        e(f"buffer_load_dwordx2 {vr(Lo,2)}, v{aXr1}, {srd(S_WS)}, s{sKAP} offen offset:512 sc0 sc1")
        e("s_waitcnt vmcnt(0)")
        e(f"s_sub_u32 s{sBND}, s{sBND}, 1")
        e("s_cbranch_scc0 L_lchk")
        em.lab("L_sum")
        for i in range(2):
            e(f"v_and_b32 v{t[4+2*i]}, 0xfffe, v{Lo+i}")
            e(f"v_lshrrev_b32 v{t[5+2*i]}, 17, v{Lo+i}")
        for i in range(4): e(f"v_lshl_or_b32 v{t[i]}, v{t[4+i]}, {1 + (i & 1)}, v{t[i]}")
    e(f"v_pk_add_f32 {v2(t[0])}, {v2(t[0])}, {v2(t[2])}")
    e(f"v_add_f32 v{t[0]}, v{t[0]}, v{t[1]}")
    e(f"v_cvt_pk_bf16_f32 v{t[0]}, v{t[0]}, v{t[0]}")
    e(f"buffer_store_short v{t[0]}, v{aXr}, {srd(S_OUT)}, s{sT1} offen")
    if STAMPS:
        em.lab("L_flush")
        e("s_waitcnt vmcnt(0)")
        e("s_memtime s[4:5]"); e("s_memrealtime s[6:7]"); e("s_waitcnt lgkmcnt(0)")
        e(f"s_lshl_b32 s8, s2, 4"); e(f"s_add_u32 s8, s8, s{sW}"); e("s_lshl_b32 s8, s8, 7"); e("s_add_u32 s8, s8, 0x100000")
        e("s_mov_b64 exec, 1"); e("v_mov_b32 v3, 0")
        for k in range(len(SN)):
            e(f"v_mov_b32 v4, s{sreg(k)}")
            e(f"buffer_store_dword v4, v3, {srd(S_WS)}, s8 offen offset:{4*k}"); e("s_nop 2")
        e("v_mov_b32 v4, s4"); e(f"buffer_store_dword v4, v3, {srd(S_WS)}, s8 offen offset:{4*len(SN)}"); e("s_nop 2")
        SN.append("end")
        e("v_mov_b32 v4, s100"); e(f"buffer_store_dword v4, v3, {srd(S_WS)}, s8 offen offset:124"); e("s_nop 2")
        e("v_mov_b32 v4, s6"); e(f"buffer_store_dword v4, v3, {srd(S_WS)}, s8 offen offset:120")
        e("s_waitcnt vmcnt(0)")

ZCG = 2
def main():
    prologue()
    e(f"s_cmp_eq_u32 s{sKAP}, 1"); em.br("s_cbranch_scc1", "L_k1", lambda c: kap(c) == 1)
    global DEF
    DEF = deferred() if "nodef" not in OPT else []
    for p in range(13): step(p, 0)
    em.jmp("L_tail")
    em.lab("L_k1")
    DEF = deferred() if "nodef" not in OPT else []
    for p in range(13): step(p, 1)
    em.lab("L_tail")
    with em.capture() as TC: tail()
    if "prio" in OPT:
        segs = [[]]
        for x in TC.lines:
            segs[-1].append(x)
            if x.kind == "bar": segs.append([])
        for sg in segs:
            n = len(sg); marks = {0: 3, n // 4: 2, n // 2: 1, 3 * n // 4: 0}
            for i, x in enumerate(sg):
                if i in marks: e(f"s_setprio {marks[i]}")
                em.L.append(x)
    else: put(TC.lines)
    final()
    em.lab("L_end")
    e("s_endpgm")
    ctxs = [(w, cg) for cg in range(4) for w in range(8)]
    L, nfix = resolve(em.L, ctxs, verbose=bool(os.environ.get("V")))
    out = ["; Kernarg: in0 idx, in1 table, in2 se_w1, in3 se_w2, in4 w_bi, in5 w_cross, in6 w_deep1, in7 w_deep2, out, debug, ws",
           "; generated by gen/g12.py -- 256 WGs (64 row groups x 4 column groups) x 8 waves",
           f"; @launch grid=(256,1,1) block=(512,1,1) lds={LDS_TOTAL}"]
    if STAMPS: out.append("; STAMPS: " + " ".join(SN))
    out += ['.amdgcn_target "amdgcn-amd-amdhsa--gfx950"', ".text", f".globl {KN}", ".p2align 8", f".type {KN},@function", f"{KN}:"]
    body = "\n".join(render(L))
    def sub(nbytes):
        nlq = (nbytes // 128 + 4) // 4
        return body.replace("NLQ*128", str(nlq * 128)).replace("NLQ", str(nlq)).replace("NLMAX", str(nbytes - 64))
    import subprocess
    open("_sz.s", "w").write('.amdgcn_target "amdgcn-amd-amdhsa--gfx950"\n.text\n' + sub(20480) + "\n")
    subprocess.run(["clang", "-x", "assembler", "-target", "amdgcn-amd-amdhsa", "-mcpu=gfx950", "-c", "_sz.s", "-o", "_sz.o"], check=True)
    r = subprocess.run("llvm-readelf -S _sz.o | grep ' .text'", shell=True, capture_output=True, text=True)
    f = r.stdout.split(); nbytes = int(f[f.index("PROGBITS") + 3], 16); print("code bytes", nbytes)
    out.append(sub(nbytes))
    out += ['.section .rodata,"a"', ".p2align 6", f".amdhsa_kernel {KN}", "  .amdhsa_next_free_vgpr 256", "  .amdhsa_next_free_sgpr 102",
            "  .amdhsa_accum_offset 256", "  .amdhsa_group_segment_fixed_size 0", "  .amdhsa_kernarg_size 88", "  .amdhsa_user_sgpr_count 2",
            "  .amdhsa_user_sgpr_kernarg_segment_ptr 1", "  .amdhsa_system_sgpr_workgroup_id_x 1", ".end_amdhsa_kernel"]
    open(sys.argv[1], "w").write("\n".join(out) + "\n")
    print("nops inserted:", nfix, "instr:", sum(1 for x in L if x.kind in ("i", "br", "bar")))
main()
```

```python
import sys, os, struct, math
sys.path.insert(0, os.path.dirname(os.path.abspath(__file__)))
from asmlib import *
STAMPS = int(os.environ.get("STAMPS", "0"))
OPT = os.environ.get("OPT", "mixse,prio,fine,zprio,se0,ib,nomid").split(",")
KN = "standalone__deep_cross_fibinet__recsys_kernel"
LDS_TOTAL = 163840
S_IDX, S_TAB, S_WC, S_W1, S_TMP, S_OUT, S_DBG, S_WS = 28, 32, 36, 40, 44, 48, 52, 56
sW, sRG, sCG, sM0, sKAP, sT0, sT1, sT2 = 86, 87, 88, 89, 90, 91, 92, 93
sLO, sHI, sBND, sZ = 94, 95, 3, 27
def srd(b): return f"s[{b}:{b+3}]"
def vr(b, n): return f"v[{b}:{b+n-1}]"
def v2(b): return f"v[{b}:{b+1}]"
def fb(x): return "0x%08x" % struct.unpack("<I", struct.pack("<f", x))[0]
C0 = -2.0 * math.sqrt(2.0 / math.pi) * math.log2(math.e); C1 = C0 * 0.044715
em = Em(); e = em.e
uid = [0]
def U(p): uid[0] += 1; return f"L_{p}{uid[0]}"
def put(ls):
    for x in ls: em.L.append(x)
def cap(fn):
    with em.capture() as c: fn()
    return c.lines
SN = ["start"]
HARD = os.environ.get("HARD", "*").split()
def sreg(k): return 98 if k == 0 else 62 + 2*k
def stamp(name):
    if not STAMPS or ("*" not in HARD and name not in HARD): return
    if name not in SN: SN.append(name)
    k = SN.index(name); assert k <= 11, SN
    e(f"s_memtime s[{sreg(k)}:{sreg(k)+1}]"); e("s_waitcnt lgkmcnt(0)")
SOFT = os.environ.get("SOFT", "").split()
def soft(name):
    if not STAMPS or name not in SOFT: return
    if name not in SN: SN.append(name)
    k = SN.index(name); assert k <= 11, SN
    e(f"s_memtime s[{sreg(k)}:{sreg(k)+1}]")
def mf32(d, a, b, c=None):
    e(f"v_mfma_f32_32x32x16_bf16 {vr(d,16)}, {vr(a,4)}, {vr(b,4)}, {'0' if c is None else vr(c,16)}")
def ptr(b, p): e(f"s_mov_b32 s{b}, s{p}"); e(f"s_and_b32 s{b+1}, s{p+1}, 0xffff")
def mksrd(b, p, sz): ptr(b, p); e(f"s_mov_b32 s{b+2}, {sz}"); e(f"s_mov_b32 s{b+3}, 0x00020000")
vL, JK, vSW, aRD, vD = 1, 6, 3, 2, 4
T = 240
IDXB = 147456; MISC = 155648
RED = 161280
ZCG = 0
iszw = lambda c: (c[1] == ZCG and c[0] == 7)

def prologue():
    t = [T + i for i in range(16)]
    e("s_cmp_ge_u32 s2, 256")
    em.br("s_cbranch_scc1", "L_end", lambda c: False)
    if STAMPS:
        e("s_memtime s[98:99]"); e("s_memrealtime s[100:101]")
        for k in range(1, 12): e(f"s_mov_b32 s{sreg(k)}, 0")
    e(f"v_lshrrev_b32 v{t[2]}, 6, v0")
    e("s_load_dwordx16 s[4:19], s[0:1], 0")
    e(f"v_readfirstlane_b32 s{sW}, v{t[2]}")
    e("s_load_dwordx4 s[20:23], s[0:1], 64")
    e("s_load_dwordx2 s[24:25], s[0:1], 80")
    e(f"s_getpc_b64 s[{sT1}:{sT2}]")
    e(f"s_bfe_u32 s{sCG}, s2, 0x20003")
    if "mixse" in OPT:
        e(f"s_lshr_b32 s{sT0}, s2, 4"); e(f"s_and_b32 s{sT0}, s{sT0}, 2"); e(f"s_xor_b32 s{sCG}, s{sCG}, s{sT0}")
    e(f"s_mul_i32 s{sT0}, s{sCG}, NLQ*128")
    e(f"v_lshl_add_u32 v{t[0]}, v0, 7, s{sT0}")
    e(f"v_min_u32 v{t[0]}, NLMAX, v{t[0]}")
    e(f"v_mov_b32 v{t[1]}, s{sT2}")
    e(f"v_add_co_u32 v{t[0]}, vcc, s{sT1}, v{t[0]}")
    e(f"v_and_b32 v{vL}, 63, v0")
    e(f"s_lshl_b32 s{sM0}, s{sW}, 10")
    e(f"v_addc_co_u32 v{t[1]}, vcc, 0, v{t[1]}, vcc")
    e("v_cmp_gt_u32 vcc, NLQ, v0")
    e(f"v_lshlrev_b32 v{t[6]}, 4, v{vL}")
    e(f"s_and_saveexec_b64 s[{sT1}:{sT2}], vcc")
    em.br("s_cbranch_execz", "L_cpf", lambda c: c[0] > 0)
    e(f"global_load_dword v{JK}, v[{t[0]}:{t[1]}], off", "cpf")
    em.lab("L_cpf")
    e("s_mov_b64 exec, -1")
    e(f"s_lshr_b32 s{sT0}, s2, 5"); e(f"s_lshl_b32 s{sT0}, s{sT0}, 3"); e(f"s_and_b32 s{sT1}, s2, 7"); e(f"s_add_u32 s{sRG}, s{sT0}, s{sT1}")
    e(f"s_lshl_b32 s{sZ}, s{sT1}, 3"); e(f"s_lshr_b32 s{sT0}, s2, 5"); e(f"s_add_u32 s{sZ}, s{sZ}, s{sT0}")
    e(f"s_and_b32 s{sT0}, s{sCG}, 1"); e(f"s_lshl_b32 s{sT0}, s{sT0}, 2"); e(f"s_and_b32 s{sT1}, s{sW}, 3"); e(f"s_add_u32 s{sT0}, s{sT0}, s{sT1}")
    e(f"s_cmp_ge_u32 s{sCG}, 2"); e(f"s_cselect_b32 s{sT0}, s{sT0}, s{sW}")
    e(f"s_lshl_b32 s{sT1}, s{sRG}, 3"); e(f"s_add_u32 s{sT0}, s{sT0}, s{sT1}"); e(f"s_mul_i32 s{sKAP}, s{sT0}, 832")
    e(f"s_mov_b32 s{S_IDX+2}, {4096*26*4}"); e(f"s_mov_b32 s{S_IDX+3}, 0x00020000")
    e(f"s_mov_b32 s{S_W1+2}, {1664*512}"); e(f"s_mov_b32 s{S_W1+3}, 0x00020000")
    e(f"s_mov_b32 s{S_WC+2}, {86528*2}"); e(f"s_mov_b32 s{S_WC+3}, 0x00020000")
    TF = int(os.environ.get("TF", "8"))
    TC = int(os.environ.get("TC", "4"))
    e(f"s_lshr_b32 s{sT0}, s2, 5"); e(f"s_lshl_b32 s{sT0}, s{sT0}, 1"); e(f"s_and_b32 s{sT1}, s{sCG}, 1"); e(f"s_add_u32 s{sT0}, s{sT0}, s{sT1}")
    e(f"s_lshl_b32 s{sT0}, s{sT0}, 3"); e(f"s_add_u32 s{sT0}, s{sT0}, s{sW}"); e(f"s_mul_i32 s{sT0}, s{sT0}, {2*TF}")
    e(f"s_cmp_ge_u32 s{sCG}, 2"); e(f"s_cselect_b32 s{sT1}, {2*TF-TC}, 0"); e(f"s_cselect_b32 s{sT2}, {TC-1}, {2*TF-1-TC}")
    e(f"s_add_u32 s{sT0}, s{sT0}, s{sT1}"); e(f"s_lshl_b32 s{sT0}, s{sT0}, 7")
    e(f"v_min_u32 v{t[7]}, s{sT2}, v{vL}")
    if TF < 26:
        nm = -(-(26 - TF) // 8)
        e(f"s_mul_i32 s{sT1}, s2, {26 - TF}"); e(f"s_mul_i32 s{sT2}, s{sW}, {nm}"); e(f"s_add_u32 s{sT1}, s{sT1}, s{sT2}"); e(f"s_add_u32 s{sT1}, s{sT1}, {TF*256}")
        e(f"s_lshr_b32 s{sT2}, s{sT0}, 7"); e(f"s_sub_u32 s{sT1}, s{sT1}, s{sT2}"); e(f"s_sub_u32 s{sT1}, s{sT1}, {64 - nm}")
        e(f"v_add_u32 v{t[8]}, s{sT1}, v{vL}")
        e(f"v_cmp_le_u32 s[{S_TMP}:{S_TMP+1}], {64 - nm}, v{vL}")
        e(f"v_cndmask_b32 v{t[7]}, v{t[7]}, v{t[8]}, s[{S_TMP}:{S_TMP+1}]")
    e(f"v_lshlrev_b32 v{t[7]}, 7, v{t[7]}")
    e(f"s_mul_i32 s{sT1}, s2, {6*128}"); e(f"s_lshl_b32 s{sT2}, s{sW}, 7"); e(f"s_add_u32 s{sT1}, s{sT1}, s{sT2}")
    e(f"s_add_u32 m0, s{sM0}, {IDXB}")
    e("s_waitcnt lgkmcnt(0)")
    ptr(S_IDX, 4)
    e(f"buffer_load_dwordx4 v{t[6]}, {srd(S_IDX)}, s{sKAP} offen lds", "idx")
    if "ib" in OPT: em.bar()
    lsm = U("sm")
    e(f"s_cmp_lt_u32 s{sCG}, 2"); em.br("s_cbranch_scc1", lsm, lambda c: c[1] < 2)
    mksrd(S_TMP, 12, 8192)
    e(f"s_mov_b32 m0, s{sM0}")
    e(f"buffer_load_dwordx4 v{t[6]}, {srd(S_TMP)}, s{sM0} offen lds", "sm")
    e(f"s_cmp_eq_u32 s{sW}, 0"); e(f"s_cselect_b32 s{S_TMP}, s8, s10"); e(f"s_cselect_b32 s{S_TMP+1}, s9, s11")
    e(f"s_and_b32 s{S_TMP+1}, s{S_TMP+1}, 0xffff"); e(f"s_movk_i32 s{S_TMP+2}, 676")
    e(f"s_add_u32 m0, s{sM0}, 114688")
    e(f"buffer_load_dwordx4 v{t[6]}, {srd(S_TMP)}, 0 offen lds", "sm")
    em.lab(lsm)
    ptr(S_W1, 16)
    e(f"buffer_load_dword v{JK}, v{t[7]}, {srd(S_W1)}, s{sT0} offen", "tch")
    ptr(S_WC, 14)
    if "wcl2" in OPT:
        e(f"v_min_u32 v{t[8]}, 640, v{t[7]}")
        e(f"s_lshr_b32 s{sT1}, s2, 3"); e(f"s_mul_i32 s{sT1}, s{sT1}, {43*128}"); e(f"s_mul_i32 s{sT2}, s{sW}, {6*128}"); e(f"s_add_u32 s{sT1}, s{sT1}, s{sT2}")
        e(f"buffer_load_dword v{JK}, v{t[8]}, {srd(S_WC)}, s{sT1} offen", "tch")
    else:
        e(f"buffer_load_dword v{JK}, off, {srd(S_WC)}, s{sT1}", "tch")
    mksrd(S_TAB, 6, 12800000)
    e(f"v_and_b32 v{t[5]}, 7, v{vL}")
    e(f"v_bfe_u32 v{t[7]}, v0, 4, 3")
    e(f"v_xor_b32 v{t[7]}, v{t[7]}, v{t[5]}")
    e(f"v_lshlrev_b32 v{vSW}, 4, v{t[7]}")
    mksrd(S_OUT, 20, 8192); mksrd(S_DBG, 22, 256); mksrd(S_WS, 24, 1 << 28)

NSL = 6
WBD = 49152
d_aE = [8, 9]; d_aW = [10, 11]; d_vW1, d_aI = 13, 14
d_ACC, d_W2, d_G, d_C, d_U, d_F = 16, 64, 80, 106, 108, 128
def deep():
    t = [T + i for i in range(16)]
    mksrd(S_TMP, 18, 512)
    g, l15, sw = t[1], t[0], t[2]
    e(f"v_lshrrev_b32 v{g}, 4, v{vL}")
    e(f"s_lshl_b32 s{sT0}, s{sCG}, 8"); e(f"s_lshr_b32 s{sT1}, s{sW}, 1"); e(f"s_lshl_b32 s{sT1}, s{sT1}, 6"); e(f"s_add_u32 s{sT0}, s{sT0}, s{sT1}")
    e(f"v_lshlrev_b32 v{t[8]}, 3, v{g}")
    for q in range(2): e(f"buffer_load_dwordx2 {v2(d_U+4+2*q)}, v{t[8]}, {srd(S_TMP)}, s{sT0} offen offset:{32*q}", "w2")
    e(f"v_lshrrev_b32 v{t[7]}, 3, v{vL}"); e(f"v_and_b32 v{t[7]}, 2, v{t[7]}")
    e(f"s_and_b32 s{sT0}, s{sW}, 1"); e(f"s_lshl_b32 s{sT0}, s{sT0}, 2"); e(f"v_or_b32 v{t[7]}, s{sT0}, v{t[7]}"); e(f"v_xor_b32 v{t[7]}, v{t[7]}, v{t[5]}")
    e(f"v_lshrrev_b32 v{t[8]}, 3, v0"); e(f"v_lshlrev_b32 v{t[8]}, 9, v{t[8]}")
    e(f"v_lshl_add_u32 v{t[7]}, v{t[7]}, 4, v{t[8]}")
    e(f"s_lshl_b32 s{sT0}, s{sCG}, 8"); e(f"v_add_u32 v{d_vW1}, s{sT0}, v{t[7]}")
    e(f"v_lshrrev_b32 v{t[4]}, 3, v{vL}"); e(f"v_mul_u32_u24 v{d_aI}, 104, v{t[4]}")
    e(f"s_add_u32 s{sT0}, s{sM0}, {IDXB}"); e(f"v_add_u32 v{d_aI}, s{sT0}, v{d_aI}")
    e(f"v_and_b32 v{l15}, 15, v{vL}"); e(f"v_bfe_u32 v{sw}, v{vL}, 1, 3")
    e(f"s_and_b32 s{sT0}, s{sW}, 1"); e(f"s_lshl_b32 s{sT0}, s{sT0}, 12")
    e(f"v_lshl_add_u32 v{t[4]}, v{l15}, 7, s{sT0}"); e(f"v_xor_b32 v{t[5]}, v{g}, v{sw}")
    e(f"v_lshl_add_u32 v{d_aE[0]}, v{t[5]}, 4, v{t[4]}"); e(f"v_xor_b32 v{d_aE[1]}, 64, v{d_aE[0]}")
    e(f"v_bfe_u32 v{t[4]}, v{vL}, 2, 2"); e(f"v_lshl_add_u32 v{t[5]}, v{g}, 3, v{t[4]}")
    e(f"s_lshr_b32 s{sT1}, s{sW}, 2"); e(f"s_mul_i32 s{sT1}, s{sT1}, 49152"); e(f"s_add_u32 s{sT1}, s{sT1}, {WBD}")
    e(f"v_lshl_add_u32 v{t[5]}, v{t[5]}, 7, s{sT1}")
    e(f"v_bfe_u32 v{t[6]}, v{vL}, 1, 1")
    e(f"s_and_b32 s{sT0}, s{sW}, 2"); e(f"s_lshl_b32 s{sT0}, s{sT0}, 1"); e(f"v_or_b32 v{t[6]}, s{sT0}, v{t[6]}")
    e(f"v_lshrrev_b32 v{t[7]}, 2, v{vL}"); e(f"v_and_b32 v{t[7]}, 6, v{t[7]}"); e(f"v_xor_b32 v{t[6]}, v{t[6]}, v{t[7]}")
    e(f"v_lshl_add_u32 v{t[5]}, v{t[6]}, 4, v{t[5]}")
    e(f"v_and_b32 v{t[7]}, 1, v{vL}"); e(f"v_lshl_add_u32 v{d_aW[0]}, v{t[7]}, 3, v{t[5]}"); e(f"v_xor_b32 v{d_aW[1]}, 32, v{d_aW[0]}")
    e(f"s_lshr_b32 s{sT1}, s{sW}, 1"); e(f"s_lshl_b32 s{sT1}, s{sT1}, 3"); e(f"s_add_u32 s{sT1}, s{sT1}, {RED}")
    e(f"s_and_b32 s{sT0}, s{sW}, 1"); e(f"s_lshl_b32 s{sT0}, s{sT0}, 10"); e(f"s_add_u32 s{sT1}, s{sT1}, s{sT0}")
    e(f"v_and_b32 v{t[4]}, 1, v{g}"); e(f"v_lshl_add_u32 v{t[4]}, v{t[4]}, 2, s{sT1}"); e(f"v_lshl_add_u32 v{t[4]}, v{l15}, 5, v{t[4]}")
    e(f"v_and_b32 v{t[5]}, 32, v{vL}"); e(f"v_lshl_add_u32 v{aRD}, v{t[5]}, 4, v{t[4]}")
    e(f"v_mov_b32 v{d_C}, {fb(C1)}"); e(f"v_mov_b32 v{d_C+1}, {fb(C0)}")
    def dE(f):
        e(f"s_add_u32 m0, s{sM0}, {(f % NSL) * 8192}")
        e(f"buffer_load_dwordx4 v{d_G+f}, {srd(S_TAB)}, 0 offen lds", f"E{f}")
    def dW(f, hf):
        e(f"s_add_u32 m0, s{sM0}, {WBD + hf*49152 + (f % NSL) * 8192}")
        e(f"s_mov_b32 s{sT0}, {f*32768 + hf*128}")
        e(f"buffer_load_dwordx4 v{d_vW1}, {srd(S_W1)}, s{sT0} offen lds", f"W{f}")
    em.wvm("idx")
    stamp("idx")
    for k in range(13): e(f"ds_read_b64 {v2(d_G+2*k)}, v{d_aI} offset:{8*k}", "I")
    em.bar()
    NW = int(os.environ.get("NW", "6"))
    for f in range(2): dW(f, 0); dW(f, 1)
    em.wlg("I")
    for f in range(26): e(f"v_lshl_add_u32 v{d_G+f}, v{d_G+f}, 7, v{vSW}")
    em.wvm("w2")
    for d in range(4):
        e(f"v_lshlrev_b32 v{d_W2+2*d}, 16, v{d_U+4+d}"); e(f"v_and_b32 v{d_W2+2*d+1}, 0xffff0000, v{d_U+4+d}")
    seq = os.environ.get("DSEQ", "W2 B E0 E1 E2")
    NPD = int(os.environ.get("NPD", "3"))
    for it in seq.split():
        if it == "B": em.bar()
        elif it[0] == "W": dW(int(it[1:]), 0); dW(int(it[1:]), 1)
        else: dE(int(it[1:]))
    stamp("pre")
    def fr(f, ks, i): return d_F + 32*(f & 1) + 16*ks + 4*i
    def reads(f, ks):
        so = (f % NSL) * 8192
        def A(ci):
            for uu in range(2): e(f"ds_read_b64_tr_b16 {v2(fr(f, ks, ci) + 2*uu)}, v{d_aW[ci]} offset:{so + (32*ks + 4*uu)*128}", f"F{f&1}{ks}{ci}")
        def B(ri): e(f"ds_read_b128 {vr(fr(f, ks, 2 + ri), 4)}, v{d_aE[ks]} offset:{so + ri*2048}", f"F{f&1}{ks}{2+ri}")
        return [cap(lambda: B(0)), cap(lambda: A(0)), cap(lambda: B(1)), cap(lambda: A(1))]
    def mms(f, ks):
        out = []
        for ci, ri in eval(os.environ.get('MORD', '((0, 0), (0, 1), (1, 1), (1, 0))')):
            D = d_ACC + 8*ri + 4*ci
            out.append(cap(lambda: (em.wlg(f"F{f&1}{ks}{ci}", f"F{f&1}{ks}{2+ri}"),
                e(f"v_mfma_f32_16x16x32_bf16 {vr(D,4)}, {vr(fr(f, ks, ci),4)}, {vr(fr(f, ks, 2+ri),4)}, {'0' if (f == 0 and ks == 0) else vr(D,4)}"))))
        return out
    def allm(f):
        a_, b_ = mms(f, 0), mms(f, 1)
        if "chain" in OPT: return [x for pr in zip(a_, b_) for x in pr]
        if "snake" in OPT: return a_ + b_[::-1]
        return a_ + b_
    DSK = int(os.environ.get("DSK", "4"))
    for f in range(26):
        em.cm(f"---- deep field {f}")
        em.wvm(f"E{f}", f"W{f}")
        em.bar([f"E{f}", f"W{f}"])
        if f in (0, 6, 25): stamp(f"b{f}")
        nx = f + int(os.environ.get('LA', '3'))
        dm = [cap(lambda: dE(nx)), cap(lambda: dW(nx, 0)), cap(lambda: dW(nx, 1))] if NPD <= nx < 26 else [[]] * 3
        RD = reads(f, 0) + reads(f, 1)
        M = (allm(f - 1)[8-DSK:] if f else [[]]*DSK) + allm(f)[:8-DSK]
        for k in range(8):
            put(M[k]); put(RD[k])
            if k in (2, 4, 6): put(dm[k // 2 - 1])
        if f == 25: flag_load()
    for m in allm(25)[8-DSK:]: put(m)
    final_pre()
    X, Uu = d_ACC, 32
    for i in range(0, 16, 2): e(f"v_pk_mul_f32 {v2(Uu+i)}, {v2(X+i)}, {v2(X+i)}")
    for i in range(0, 16, 2): e(f"v_pk_fma_f32 {v2(Uu+i)}, {v2(Uu+i)}, {v2(d_C)}, {v2(d_C)} op_sel:[0,0,1] op_sel_hi:[1,0,1]")
    for i in range(0, 16, 2): e(f"v_pk_mul_f32 {v2(Uu+i)}, {v2(Uu+i)}, {v2(X+i)}")
    for i in range(16): e(f"v_exp_f32 v{Uu+i}, v{Uu+i}")
    for i in range(0, 16, 2): e(f"v_pk_add_f32 {v2(Uu+i)}, {v2(Uu+i)}, 1.0 op_sel_hi:[1,0]")
    for i in range(16): e(f"v_rcp_f32 v{Uu+i}, v{Uu+i}")
    for i in range(0, 16, 2): e(f"v_pk_mul_f32 {v2(X+i)}, {v2(X+i)}, {v2(d_W2+(i&7))}")
    S = [d_U, d_U + 2]
    for i in range(0, 8, 2):
        for ri in range(2):
            if i == 0: e(f"v_pk_mul_f32 {v2(S[ri])}, {v2(X+8*ri)}, {v2(Uu+8*ri)}")
            else: e(f"v_pk_fma_f32 {v2(S[ri])}, {v2(X+8*ri+i)}, {v2(Uu+8*ri+i)}, {v2(S[ri])}")
    for ri in range(2): e(f"v_add_f32 v{vD+ri}, v{S[ri]}, v{S[ri]+1}")
    e(f"v_permlane32_swap_b32 v{vD}, v{vD+1}")
    e(f"v_add_f32 v{vD}, v{vD}, v{vD+1}")
    e(f"ds_write_b32 v{aRD}, v{vD}", "rw")

EBC = 8192
AIM = 39936
SW1, SW2 = 114688, 114688 + 1024
SIG = [[0, 1, 2, 3, 8, 9, 12], [4, 5, 6, 7, 10, 11]]
KT = {sg: (ks, t) for ks in range(2) for t, sg in enumerate(SIG[ks])}
GPOS = [114688 + 6656*i for i in range(7)] + [6656*i for i in range(6)]
GPOS += [48128 + 6656*i for i in range(10)] + [114688 + 6656*i for i in range(3)]
c_aE = [8, 9, 10, 11]
c_aY, c_vWC, c_aC, c_aA = 12, 15, 7, 13
Y, XF0, XF1, WF, TB = 16, 68, 100, 132, 196
BFS = [WF, WF + 32]
WLO, WHI = TB, TB + 8
XD = TB + 16
G = XF0 + 16
SA1, ZP = TB + 48, TB + 56
c_aI, GN, EA1, EA2 = 14, TB + 52, TB + 54, TB + 55
SA2 = vD
sEX, sCM = 60, 26
sZM = 96
def sig(u): return SIG[u & 1][u >> 1]
def usig(sg): return 2 * KT[sg][1] + KT[sg][0]
PK_SIG = sum(sig(u) << (4*u) for u in range(13))
PK_U = sum(usig(sg) << (4*sg) for sg in range(13))
def vtab(dst, x, pk, tmp):
    e(f"v_mov_b32 v{tmp}, {pk & 0xffffffff}"); e(f"v_mov_b32 v{tmp+1}, {pk >> 32}")
    e(f"v_lshlrev_b32 v{dst}, 2, v{x}"); e(f"v_lshrrev_b64 {v2(tmp)}, v{dst}, {v2(tmp)}"); e(f"v_and_b32 v{dst}, 15, v{tmp}")
def weave(main, side, first=0, every=3):
    out = []; side = list(side)
    for i, x in enumerate(main):
        if side and i >= first and (i - first) % every == 0:
            y = side.pop(0); out += y if isinstance(y, list) else [y]
        out.append(x)
    for y in side: out += y if isinstance(y, list) else [y]
    return out
def mix(vl, ms):
    n = len(ms); k = 0
    for i, m in enumerate(ms):
        m(); k2 = (i + 1) * len(vl) // n; put(vl[k:k2]); k = k2
def wc_group(gi):
    e(f"s_add_u32 m0, s{sCM}, {GPOS[gi]}")
    e(f"s_mov_b64 exec, s[{sEX}:{sEX+1}]")
    e(f"s_mov_b32 s{sT0}, {gi * 6656}")
    e(f"buffer_load_dwordx4 v{c_vWC}, {srd(S_WC)}, s{sT0} offen lds", f"U{gi}")
    e("s_mov_b64 exec, -1")
LT = eval(os.environ.get("LT", "[(8,16),(16,26)]"))
def w1_touch(n):
    f0, f1 = LT[n]; nl = 2 * (f1 - f0)
    e(f"s_lshr_b32 s{sT0}, s2, 5"); e(f"s_lshl_b32 s{sT0}, s{sT0}, 1"); e(f"s_and_b32 s{sT1}, s{sCG}, 1"); e(f"s_add_u32 s{sT0}, s{sT0}, s{sT1}")
    e(f"v_min_u32 v{JK}, {nl-1}, v{vL}")
    e(f"s_lshl_b32 s{sT0}, s{sT0}, 3"); e(f"s_add_u32 s{sT0}, s{sT0}, s{sW}"); e(f"s_mul_i32 s{sT0}, s{sT0}, {nl*128}"); e(f"s_add_u32 s{sT0}, s{sT0}, {f0*32768}")
    e(f"v_lshlrev_b32 v{JK}, 7, v{JK}")
    e(f"buffer_load_dword v0, v{JK}, {srd(S_W1)}, s{sT0} offen", "tch2")
ZSH = int(os.environ.get("ZSH", "2"))
def is_zeroer():
    e(f"s_and_b32 s{sT1}, s{sZ}, {(1 << ZSH) - 1}"); e(f"s_lshl_b32 s{sT1}, s{sT1}, 2"); e(f"s_add_u32 s{sT1}, s{sT1}, s{sCG}"); e(f"s_cmp_eq_u32 s{sT1}, 2")
def zero_slots():
    per = (512 << ZSH) // 8
    e(f"v_mov_b32 v{GN}, 0"); e(f"v_mov_b32 v{GN+1}, 0"); e(f"v_lshlrev_b32 v{JK}, 3, v{vL}"); e(f"v_and_b32 v{JK}, {per - 1}, v{JK}")
    e(f"s_lshl_b32 s{sT0}, s{sZ}, 9"); e(f"s_mul_i32 s{sT1}, s{sW}, {per}"); e(f"s_add_u32 s{sT0}, s{sT0}, s{sT1}")
    is_zeroer()
    e(f"s_cselect_b32 s{sT0}, s{sT0}, 0x40000000")
    e(f"buffer_store_dwordx2 {v2(GN)}, v{JK}, {srd(S_WS)}, s{sT0} offen sc0 sc1", "zero")
def flag_load():
    l = U("f")
    e(f"s_cmp_lg_u32 s{sW}, 0"); em.br("s_cbranch_scc1", l, lambda c: c[0] != 0)
    e(f"s_lshr_b32 s{sT0}, s{sZ}, {ZSH}"); e(f"s_lshl_b32 s{sT0}, s{sT0}, {2 + ZSH}")
    e(f"buffer_load_dword v{JK}, off, {srd(S_DBG)}, s{sT0} sc0 sc1", "fl")
    em.lab(l)
def cE(k):
    r = GN + (k & 1)
    e(f"s_add_u32 m0, s{sM0}, {EBC + k*8192}")
    em.wlg(f"I{k}"); e(f"v_lshl_add_u32 v{r}, v{r}, 7, v{vSW}")
    e(f"buffer_load_dwordx4 v{r}, {srd(S_TAB)}, 0 offen lds", f"E{k}")
    if k + 2 < 13: e(f"ds_read_b32 v{r}, v{c_aI} offset:{8*(k+2)}", f"I{k+2}")
def cross_pro():
    EBAR = eval(os.environ.get("EBAR", "(1, 3)"))
    t5, t6 = T + 5, T + 6
    t = [Y + i for i in range(16)]
    aI = c_aI
    e(f"v_lshrrev_b32 v{t[4]}, 3, v{vL}"); e(f"v_mul_u32_u24 v{aI}, 104, v{t[4]}")
    e(f"s_lshr_b32 s{sT1}, s{sW}, 2"); e(f"s_lshl_b32 s{sT1}, s{sT1}, 2"); e(f"s_add_u32 s{sT0}, s{sM0}, s{sT1}"); e(f"s_add_u32 s{sT0}, s{sT0}, {IDXB}")
    e(f"v_add_u32 v{aI}, s{sT0}, v{aI}")
    b, h, sw, g = t[0], t[1], t[2], t[3]
    e(f"s_and_b32 s{sT2}, s{sW}, 1"); e(f"s_lshl_b32 s{sT2}, s{sT2}, 4")
    e(f"v_and_b32 v{b}, 31, v{vL}"); e(f"v_xor_b32 v{b}, s{sT2}, v{b}")
    e(f"v_lshrrev_b32 v{h}, 5, v{vL}"); e(f"v_bfe_u32 v{sw}, v{vL}, 1, 3"); e(f"v_lshrrev_b32 v{g}, 4, v{vL}")
    e(f"v_and_b32 v{t[4]}, 15, v{vL}"); e(f"v_or_b32 v{t[5]}, s{sT2}, v{t[4]}")
    e(f"v_xor_b32 v{t[6]}, v{g}, v{sw}"); e(f"v_lshlrev_b32 v{t[6]}, 4, v{t[6]}")
    e(f"v_lshl_add_u32 v{c_aE[0]}, v{t[5]}, 7, v{t[6]}")
    e(f"v_xor_b32 v{c_aE[1]}, 64, v{c_aE[0]}"); e(f"v_xor_b32 v{c_aE[2]}, 2048, v{c_aE[0]}"); e(f"v_xor_b32 v{c_aE[3]}, 2048, v{c_aE[1]}")
    e(f"v_xor_b32 v{t[5]}, s{sW}, v{sw}"); e(f"v_lshlrev_b32 v{t[6]}, 12, v{h}"); e(f"v_lshl_add_u32 v{t[6]}, v{b}, 7, v{t[6]}")
    e(f"v_lshl_add_u32 v{c_aY}, v{t[5]}, 4, v{t[6]}")
    e(f"v_lshlrev_b32 v{c_aA}, 11, v{h}"); e(f"v_lshl_add_u32 v{c_aA}, v{b}, 4, v{c_aA}")
    e(f"v_bfe_u32 v{t[5]}, v{vL}, 2, 2"); e(f"v_lshl_add_u32 v{t[5]}, v{g}, 3, v{t[5]}")
    e(f"s_lshl_b32 s{sT0}, s{sW}, 4"); e(f"v_lshl_add_u32 v{t[5]}, v{t[5]}, 7, s{sT0}")
    e(f"v_and_b32 v{t[6]}, 1, v{vL}"); e(f"v_lshl_add_u32 v{t[10]}, v{t[6]}, 3, v{t[5]}")
    e(f"v_bfe_i32 v{t[11]}, v{vL}, 3, 1")
    def ablk():
        e(f"s_lshl_b32 s{sT0}, s{sW}, 3"); e(f"s_lshl_b32 s{sT1}, s{sW}, 1"); e(f"s_add_u32 s{sT1}, s{sT1}, 36")
        e(f"s_cmp_ge_u32 s{sW}, 6"); e(f"s_cselect_b32 s{sT0}, s{sT1}, s{sT0}"); e(f"s_cselect_b32 s{sEX}, 0xffff, -1"); e(f"s_cselect_b32 s{sEX+1}, 0, -1")
        e(f"s_lshl_b32 s{sCM}, s{sT0}, 7")
        e(f"v_lshrrev_b32 v{t[4]}, 3, v{vL}"); e(f"v_add_u32 v{t[4]}, s{sT0}, v{t[4]}")
        e(f"v_subrev_u32 v{t[5]}, 26, v{t[4]}"); e(f"v_min_u32 v{t[5]}, v{t[4]}, v{t[5]}")
        e(f"v_lshrrev_b32 v{t[8]}, 1, v{t[5]}")
        vtab(t[5], t[8], PK_U, t[6])
        e(f"v_xor_b32 v{t[5]}, v{t[5]}, v{vL}"); e(f"v_and_b32 v{t[5]}, 7, v{t[5]}")
        e(f"v_lshlrev_b32 v{t[4]}, 7, v{t[4]}"); e(f"v_lshl_add_u32 v{c_vWC}, v{t[5]}, 4, v{t[4]}")
        e(f"v_bfe_u32 v{t[4]}, v{vL}, 3, 2"); e(f"v_and_b32 v{t[5]}, 3, v{vL}"); e(f"v_lshl_add_u32 v{t[4]}, v{t[4]}, 2, v{t[5]}"); e(f"v_min_u32 v{t[4]}, 12, v{t[4]}")
        vtab(t[5], t[4], PK_SIG, t[6])
        e(f"v_bfe_u32 v{t[6]}, v{vL}, 2, 1"); e(f"v_lshl_add_u32 v{t[5]}, v{t[5]}, 1, v{t[6]}")
        e(f"v_mad_u32_u24 v{t[5]}, v{h}, 26, v{t[5]}")
        e(f"v_xor_b32 v{t[4]}, s{sW}, v{t[4]}"); e(f"v_and_b32 v{t[4]}, 7, v{t[4]}"); e(f"v_lshlrev_b32 v{t[4]}, 4, v{t[4]}")
        e(f"v_lshl_add_u32 v{c_aC}, v{t[5]}, 7, v{t[4]}")
        e(f"s_and_b32 s{sT0}, s{sCG}, 1"); e(f"s_lshl_b32 s{sT0}, s{sT0}, 10"); e(f"s_lshl_b32 s{sT1}, s{sW}, 2"); e(f"s_add_u32 s{sT0}, s{sT0}, s{sT1}"); e(f"s_add_u32 s{sT0}, s{sT0}, {RED}")
        e(f"v_lshl_add_u32 v{aRD}, v{b}, 5, s{sT0}")
        e(f"s_mov_b32 s{sLO}, 0x05040100"); e(f"s_mov_b32 s{sHI}, 0x07060302")
        for i in range(8): e(f"v_mov_b32 v{XF1 + 4*i + 3}, 0")
    if "alate" not in OPT: ablk()
    em.wvm("idx")
    stamp("idx")
    NE0 = int(os.environ.get("NE0", "6"))
    for k in range(NE0): e(f"ds_read_b32 v{G+k}, v{aI} offset:{8*k}", f"I{k}")
    for k in range(NE0, NE0 + 2): e(f"ds_read_b32 v{GN + (k & 1)}, v{aI} offset:{8*k}", f"I{k}")
    for k in range(NE0):
        e(f"s_add_u32 m0, s{sM0}, {EBC + k*8192}")
        em.wlg(f"I{k}"); e(f"v_lshl_add_u32 v{G+k}, v{G+k}, 7, v{vSW}")
        e(f"buffer_load_dwordx4 v{G+k}, {srd(S_TAB)}, 0 offen lds", f"E{k}")
        if k in EBAR:
            if k == EBAR[0]: em.wvm("sm")
            em.bar(["sm"])
    for ks in range(2):
        for uu in range(2):
            e(f"ds_read_b64_tr_b16 {v2(WLO + ks*4 + uu*2)}, v{t[10]} offset:{(32*ks + 4*uu)*128}", "wbi")
    if "alate" in OPT: ablk()
    e(f"v_not_b32 v{t[12]}, v{t[11]}")
    em.wlg("wbi")
    for i in range(8):
        e(f"v_and_b32 v{WHI+i}, v{t[11]}, v{WLO+i}"); e(f"v_and_b32 v{WLO+i}, v{t[12]}, v{WLO+i}")
    e(f"s_cmp_lt_u32 s{sW}, 4"); em.br("s_cbranch_scc1", "L_r0", lambda c: c[0] < 4)
    u = [XF0 + i for i in range(12)]
    e(f"v_and_b32 v{t[14]}, 0x3c803c80, v{t[11]}"); e(f"v_and_b32 v{t[15]}, 0x3c803c80, v{t[12]}")
    for i in range(8):
        e(f"v_or_b32 v{WLO+i}, v{t[14]}, v{WLO+i}"); e(f"v_or_b32 v{WHI+i}, v{t[15]}, v{WHI+i}")
    e(f"v_and_b32 v{t[4]}, 15, v{vL}"); e(f"v_min_u32 v{t[4]}, 12, v{t[4]}")
    e(f"v_xor_b32 v{t[5]}, 1, v{h}"); e(f"v_mul_u32_u24 v{t[5]}, 26, v{t[5]}")
    e(f"v_lshl_add_u32 v{t[5]}, v{t[4]}, 1, v{t[5]}"); e(f"v_add_u32 v{t[5]}, {SW1}, v{t[5]}")
    e(f"v_and_b32 v{t[8]}, 1, v{g}"); e(f"v_mul_u32_u24 v{t[8]}, 104, v{t[8]}"); e(f"v_add_u32 v{t[11]}, v{t[5]}, v{t[8]}"); e(f"v_add_u32 v{t[12]}, v{t[11]}, v{t[8]}")
    for k in range(7): e(f"ds_read_u16 v{u[k] if k < 6 else SA1+3}, v{t[12] if k < 4 else t[11]} offset:{52*SIG[0][k]}", "a1")
    vtab(t[13], t[4], PK_SIG, t[6])
    e(f"s_and_b32 s{sT0}, s{sW}, 2"); e(f"s_add_u32 s{sT0}, s{sT0}, {SW2}")
    e(f"v_lshl_add_u32 v{t[6]}, v{t[13]}, 2, s{sT0}"); e(f"v_mul_u32_u24 v{t[7]}, 208, v{g}"); e(f"v_add_u32 v{t[6]}, v{t[6]}, v{t[7]}")
    for k in range(4): e(f"ds_read_u16 v{u[8+k]}, v{t[6]} offset:{52*k}", "a2")
    e(f"v_mov_b32 v{ZP+3}, 0")
    em.wlg("a1")
    for d in range(3): e(f"v_lshl_or_b32 v{SA1+d}, v{u[2*d+1]}, 16, v{u[2*d]}")
    em.wlg("a2")
    for d in range(2): e(f"v_lshl_or_b32 v{SA2+d}, v{u[8+2*d+1]}, 16, v{u[8+2*d]}")
    stamp("pre")

def m16(d, a, b, first): e(f"v_mfma_f32_16x16x32_bf16 {vr(d,4)}, {vr(a,4)}, {vr(b,4)}, {'0' if first else vr(d,4)}")
def xfr(e_, ks): return (XF0 if ks == 0 else XF1) + 4*e_
ZSV = 14
def cross_step(sg, R):
    em.cm(f"---- cross step {sg} role {R}")
    so = lambda x: EBC + x * 8192 - (57344 if x >= 6 else 0)
    def xd(q, tl, hh): return XD + 8*(q & 1) + 4*tl + (16*hh if R == 1 else 0)
    def reads(x):
        B = BFS[x & 1]
        return cap(lambda: [e(f"ds_read_b128 {vr(B + 16*hh + 8*tl + 4*ks, 4)}, v{c_aE[2*tl + ks]} offset:{so(x) + hh*4096}", f"F{x&1}_{2*tl+hh}")
                            for tl in range(2 if 'xhalfX' not in OPT else 1) for hh in range(2) for ks in range(2)])
    def mms(q):
        B = BFS[q & 1]; out = []
        for tl in range(2):
            for hh in range(2):
                c = cap(lambda: (em.wlg(f"F{q&1}_{2*tl+hh}"), [m16(xd(q, tl, hh), [WLO, WHI][hh] + 4*ks, B + 16*hh + 8*tl + 4*ks, (hh == 0 or R == 1) and ks == 0) for ks in range(2)]))
                out.append(c if not ('xhalfX' in OPT and tl == 1) else [])
        return out
    def fin_z(q): pass
    def fin_c(q, rng):
        ks_, t = KT[q]
        if not (t % 2 == 1 or q == 12): return
        def cv(dst, src): e(f"v_cvt_pk_bf16_f32 v{dst}, v{src}, {'v%d' % (src+8) if q < 12 else '0'}")
        if R == 0:
            for i in rng: cv(xfr(i, ks_) + t//2, XD + i)
            return
        for i in rng: cv(xfr(i, ks_) + t//2, XD + 16 + i)
        e("s_mov_b32 exec_hi, 0")
        for i in rng: cv(xfr(i, ks_) + t//2, XD + i)
        if rng[0] == 0:
            gm = hex(0xffff << (16*ks_))
            e(f"s_mov_b32 exec_lo, {gm}"); cv(ZP + t//2, XD + 16)
            e(f"s_mov_b32 exec_lo, 0"); e(f"s_mov_b32 exec_hi, {gm}"); cv(ZP + t//2, XD)
        e("s_mov_b64 exec, -1")
    def fin_s(q, rng):
        ks_, t = KT[q]
        if t % 2 == 1 or q == 12:
            for r in rng: e(f"v_permlane16_swap_b32 v{xfr(r, ks_) + t//2}, v{xfr(4+r, ks_) + t//2}")
    if sg == 6:
        for r in c_aE + [c_aY]: e(f"v_add_u32 v{r}, 57344, v{r}")
    if sg <= 12:
        if sg in BARS:
            up = [x for x in range(sg, 13) if x == sg or all(y not in BARS for y in range(sg + 1, x + 1))]
            ut = [f"U{i}" for i in range(NER)] if sg == 12 else []
            em.wvm(*([f"E{x}" for x in up] + ut))
            em.bar([f"E{x}" for x in up] + ut)
        if sg in (0, 6, 12): stamp({0: "b0", 6: "b6", 12: "b25"}[sg])
        if f"c{sg}" in HARD: stamp(f"c{sg}")
        RD = reads(sg)
        CAPS = cap(lambda: e(f"ds_read_b128 {vr(Y + 4*usig(sg), 4)}, v{c_aY} offset:{so(sg)}", "cap"))
    else:
        CAPS = []
        RD = cap(lambda: (e(f"v_add_u32 v{EA1}, 59904, v{c_aC}"), e(f"v_add_u32 v{EA2}, {2*59904}, v{c_aC}"), [rd(0, i, True) for i in range(NER)]))
    side = [cap(lambda nx=nx: cE(nx) if nx < 13 else (wc_group(nx - 13) if nx < 80 else (zero_slots() if nx == 80 else w1_touch(nx - 90)))) for nx in ISS.get(sg, ())]
    q = sg - 1
    M = mms(q) if sg >= 1 else [[]]*4
    if sg == 0 and R == 1 and "zprio" in OPT: e("s_setprio 2")
    if "zfirst" in OPT and R == 1 and sg >= 12:
        atom = lambda fn: [cap(fn)]
        if sg == 12:
            put(weave(M[0] + M[1], RD[:4], 1, 1))
            put(RD[4:] + CAPS)
            fin_c(11, range(4))
            M2 = mms(12)
            put(M2[0] + M2[1])
            put(M[2] + M[3])
            for x in side: put(x)
            fin_c(12, range(4))
        else:
            rest = [cap(lambda: fin_c(11, range(4, 8))), M[2], M[3], cap(lambda: fin_s(11, range(4)))] + [[x] for x in RD]
            put(weave(cap(senet), rest, 1, 4))
            fin_c(12, range(4, 8)); fin_s(12, range(4))
        return
    if "fine" in OPT and 1 <= sg <= 13:
        ml = [x for m in M for x in m]
        half = len(M[0]) + len(M[1])
        A_ = weave(ml[:half], RD[:5], 2, 1)
        put(A_)
        if sg >= 2: fin_c(sg - 2, range(4, 8))
        put(weave(ml[half:], RD[5:] + CAPS, 2, 1))
        if sg >= 2: fin_s(sg - 2, range(4))
        fin_z(q); fin_c(q, range(4))
        for x in side: put(x)
        if sg == 13: fin_c(12, range(4, 8)); fin_s(12, range(4))
        return
    put(RD[:2])
    put(M[0]); put(RD[2:4])
    if sg >= 2: fin_c(sg - 2, range(4, 8))
    put(M[1]); put(RD[4:6])
    if sg >= 2: fin_s(sg - 2, range(4))
    if side: put(side.pop(0))
    put(M[2]); put(RD[6:8]); put(CAPS)
    if side: put(side.pop(0))
    put(M[3])
    if sg >= 1: fin_z(q); fin_c(q, range(4))
    for x in side: put(x)
    if sg == 13: fin_c(12, range(4, 8)); fin_s(12, range(4))
BARS = eval(os.environ.get("BARS", "(0,2,4,6,8,10,12)"))
ISS = eval(os.environ.get("ISS", "{0: [6], 1: [7], 2: [8], 3: [9, 90], 4: [10], 5: [11], 6: [12, 80], 7: [13, 14, 15], 8: [16, 17, 18], 9: [19, 20], 10: [21, 22], 11: [23, 24], 12: [25, 91]}"))
NEG2 = max(x for v in ISS.values() for x in v if x < 80) - 12

def senet_pre():
    a1, ZF, S1, g, k, aw = SA1, WF, WF + 4, WF + 16, WF + 20, WF + 22
    e(f"v_mov_b32 v{k}, {fb(C1)}")
    e(f"s_and_b32 s{sT0}, s{sW}, 2"); e(f"s_lshl_b32 s{sT0}, s{sT0}, 10"); e(f"s_and_b32 s{sT1}, s{sW}, 1"); e(f"s_lshl_b32 s{sT1}, s{sT1}, 8"); e(f"s_add_u32 s{sT0}, s{sT0}, s{sT1}"); e(f"s_add_u32 s{sT0}, s{sT0}, {AIM}")
    e(f"v_lshrrev_b32 v{aw}, 4, v{vL}"); e(f"v_lshl_add_u32 v{aw}, v{aw}, 9, s{sT0}")
    e(f"v_and_b32 v{aw+1}, 15, v{vL}"); e(f"v_lshl_add_u32 v{aw}, v{aw+1}, 4, v{aw}")
def senet():
    a1, ZF, S1, g, k, aw = SA1, WF, WF + 4, WF + 16, WF + 20, WF + 22
    e(f"v_mfma_f32_16x16x32_bf16 {vr(S1,4)}, {vr(a1,4)}, {vr(ZP,4)}, 0")
    senet_pre()
    for i in range(4): e(f"v_mul_f32 v{g+i}, v{S1+i}, v{S1+i}")
    for i in range(4): e(f"v_fmaak_f32 v{g+i}, v{g+i}, v{k}, {fb(C0)}")
    for i in range(4): e(f"v_mul_f32 v{g+i}, v{g+i}, v{S1+i}")
    for i in range(4): e(f"v_exp_f32 v{g+i}, v{g+i}")
    for i in range(4): e(f"v_add_f32 v{g+i}, 1.0, v{g+i}")
    for i in range(4): e(f"v_rcp_f32 v{g+i}, v{g+i}")
    for i in range(4): e(f"v_mul_f32 v{g+i}, v{g+i}, v{S1+i}")
    for d in range(2): e(f"v_cvt_pk_bf16_f32 v{ZF+d}, v{g+2*d}, v{g+2*d+1}")
    e(f"v_mfma_f32_16x16x16_bf16 {vr(S1,4)}, {v2(SA2)}, {v2(ZF)}, 0")
    for i in range(4): e(f"v_mul_f32 v{g+i}, {fb(-math.log2(math.e))}, v{S1+i}")
    for i in range(4): e(f"v_exp_f32 v{g+i}, v{g+i}")
    for i in range(4): e(f"v_add_f32 v{g+i}, 1.0, v{g+i}")
    for i in range(4): e(f"v_rcp_f32 v{g+i}, v{g+i}")
    for d in range(2): e(f"v_cvt_pk_bf16_f32 v{ZF+d}, v{g+2*d}, v{g+2*d+1}")
    e(f"v_and_b32 v{ZF+2}, 0xffff, v{ZF}"); e(f"v_lshrrev_b32 v{ZF+3}, 16, v{ZF}")
    for d in range(2):
        e(f"v_lshlrev_b32 v{g+2*d}, 16, v{ZF+d}"); e(f"v_and_b32 v{g+2*d+1}, 0xffff0000, v{ZF+d}")
def senet_write():
    a1, ZF, S1, g, k, aw = SA1, WF, WF + 4, WF + 16, WF + 20, WF + 22
    e(f"ds_write_b64 v{aw}, {v2(ZF+2)} offset:4096", "xw")
    e(f"ds_write_b128 v{aw}, {vr(g,4)}", "xw")

aC1, aC2 = EA1, EA2
RR = [WF + 32 + 4*i for i in range(8)] + [WF + 4*i for i in range(5)]
NER = int(os.environ.get("NER", "7"))
def rd(part, i, early=False):
    pos = GPOS[13*part + i]
    aC1, aC2 = (EA1, EA2) if early else (c_aE[0], c_aE[1])
    a, o = (c_aC, pos) if pos < 59000 else ((aC1, pos - 59904) if pos < 59904 + 59000 else (aC2, pos - 2*59904))
    e(f"ds_read_b128 {vr(RR[i], 4)}, v{a} offset:{o}", f"C{i}")
def cross_mid(R):
    for g_ in range(NEG2, 13): wc_group(g_)
    e(f"v_mov_b32 v{c_aE[0]}, v{EA1}"); e(f"v_mov_b32 v{c_aE[1]}, v{EA2}")
    if R == 1 and "se0" in OPT and "zfirst" not in OPT: senet()
    em.wvm(*([f"U{i}" for i in range(13)] + ["zero"])); em.wlg("cap")
    if R == 1 and "se0" in OPT: senet_write()
    if "nomid" in OPT: em.wlg("*")
    em.bar([f"U{i}" for i in range(13)] + ["zero"])
    stamp("t3")
    if R == 0:
        l = U("fl")
        e(f"s_cmp_lg_u32 s{sW}, 3"); em.br("s_cbranch_scc1", l, lambda c: c[0] != 3)
        is_zeroer(); em.br("s_cbranch_scc0", l, lambda c: c[1] != 2)
        e(f"v_mov_b32 v{JK}, 1"); e(f"s_lshl_b32 s{sT0}, s{sZ}, 2")
        e("s_mov_b64 exec, 1")
        e(f"buffer_store_dword v{JK}, off, {srd(S_DBG)}, s{sT0} sc0 sc1", "flag")
        e("s_mov_b64 exec, -1")
        em.lab(l)
    RDS = cap(lambda: [rd(0, i) for i in range(NER, 13)])
    if R == 1 and "se0" not in OPT:
        e("s_setprio 3")
        put(weave(cap(senet), RDS, 1, 2))
        senet_write()
    else: put(RDS)

def cross_tail():
    aA = c_aA
    R = RR
    FK = [[WF + 20, WF + 24], [WF + 28, TB], [TB + 4, TB + 8]]
    BK = [WF + 76 + 16*i for i in range(3)]
    xf = xfr
    n1 = int(os.environ.get("N1", "7"))
    GR = [cap(lambda: wc_group(g_)) for g_ in range(26)]
    def pre():
        for i in range(3): e(f"v_mov_b32 v{FK[i][1] + 3}, 0")
        e(f"v_mov_b32 v{vD}, 0"); e(f"v_mov_b32 v{vD+1}, 0")
    pre()
    def perms(ee):
        f = FK[ee % 3]
        for ks, s_ in ((0, 0), (0, 1), (1, 0), (1, 1), (0, 2), (1, 2)):
            a_, b_ = SIG[ks][2*s_], SIG[ks][2*s_+1]
            em.wlg(f"C{b_}")
            e(f"v_perm_b32 v{f[ks] + s_}, v{R[b_] + (ee>>1)}, v{R[a_] + (ee>>1)}, s{sHI if ee & 1 else sLO}")
        em.wlg("C12")
        if ee & 1: e(f"v_lshrrev_b32 v{f[0] + 3}, 16, v{R[12] + (ee>>1)}")
        else: e(f"v_and_b32 v{f[0] + 3}, 0xffff, v{R[12] + (ee>>1)}")
    def blk(ee): return BK[ee % 3]
    def Ms(ee): return [lambda ks=ks: mf32(blk(ee), FK[ee % 3][ks], xf(ee, ks), None if ks == 0 else blk(ee)) for ks in range(2)]
    def cvts(pr):
        for u in range(13): e(f"v_cvt_pk_bf16_f32 v{R[u]+pr}, v{blk(2*pr)+u}, v{blk(2*pr+1)+u}")
    def contract(acc, side, nm="p", last=(), fill=()):
        side = list(side) + [[]]*8
        P_ = lambda *x: cap(lambda: [perms(i) for i in x])
        C_ = lambda pr: cap(lambda: cvts(pr))
        soft(nm + "s")
        perms(0)
        soft(nm + "0")
        plan = [P_(1, 2), P_(3), P_(4) + C_(0), P_(5), P_(6) + C_(1), P_(7), C_(2), list(fill)]
        for ee in range(8):
            v = plan[ee]; m = Ms(ee)
            k = min(7, (len([x for x in v if x.kind == "i"]) + 1) // 2) if ee != 6 else 0
            pos = 0; cnt = 0
            while pos < len(v) and cnt < k:
                if v[pos].kind == "i": cnt += 1
                pos += 1
            m[0](); put(v[:pos]);
            if ee == 6: put(side[ee]); side[ee] = []
            m[1](); put(v[pos:]); put(side[ee])
            if ee & 1: soft(nm + str(ee // 2 + 1))
        if DOTE: put(cap(lambda: [e(acc(0, u)) for u in range(13)]))
        put(weave(C_(3), last, 0, 2))
        for pr in range(1 if DOTE else 0, 4):
            for u in range(13): e(acc(pr, u))
    DOTE = int(os.environ.get("DOTE", "0"))
    AV, UT = BK[2], [BK[0] + i for i in range(26)]
    AL = [FK[0][0], FK[0][0] + 2, FK[2][0], FK[2][0] + 2]
    AR = []
    for q in range(4):
        AR += cap(lambda: e(f"ds_read_b64 {v2(AL[q])}, v{aA} offset:{AIM + 4096 + q*512}", f"a{q}"))
        AR += cap(lambda: e(f"ds_read_b128 {vr(AV + 4*q, 4)}, v{aA} offset:{AIM + q*512}", f"a{q}"))
    BAR = [I("", kind="wlg", arg={"xw"}), I("s_barrier", kind="bar", arg={"xw"})] if "nomid" not in OPT else []
    QP = eval(os.environ.get("QP", "[1, 2, 0, 2, 0, 2, 1, 2]"))
    sl = []; k_ = 13
    for n_ in QP:
        sl.append([x for g_ in GR[k_:k_+n_] for x in g_]); k_ += n_
    sl[5] = sl[5] + BAR
    contract(lambda pr, u: f"v_dot2c_f32_bf16 v{vD+(u&1)}, v{R[u]+pr}, v{Y+4*u+pr}",
             sl, "p", AR)
    stamp("p")
    def scale(ee):
        u = UT[13*(ee & 1):13*(ee & 1) + 13]
        for s_ in range(4):
            em.wlg(f"a{s_}")
            for ks in range(2):
                if s_ == 3 and ks == 1: continue
                x = xf(ee, ks) + s_
                e(f"v_dot2_f32_bf16 v{u[4*s_+2*ks]}, v{x}, v{AL[s_]+ks}, 0")
                if s_ < 3: e(f"v_dot2_f32_bf16 v{u[4*s_+2*ks+1]}, v{x}, v{AV+4*s_+2+ks}, 0")
        for s_ in range(4):
            for ks in range(2):
                if s_ == 3 and ks == 1: continue
                e(f"v_cvt_pk_bf16_f32 v{xf(ee, ks) + s_}, v{u[4*s_+2*ks]}, {'v%d' % u[4*s_+2*ks+1] if s_ < 3 else '0'}")
    put(weave(cap(lambda: (scale(0), soft("s1"), scale(1), scale(2))), GR[k_:26], 4, int(os.environ.get('QE', '10'))))
    NSQ = int(os.environ.get('NSQ', '5'))
    for ee in range(3, NSQ): scale(ee)
    soft("s5")
    em.wvm(*[f"U{i}" for i in range(26)])
    em.bar([f"U{i}" for i in range(26)])
    stamp("q")
    flag_load()
    put(weave(cap(lambda: [scale(ee) for ee in range(NSQ, 8)]), cap(lambda: [rd(1, i) for i in range(13)]), 0, 4 if NSQ <= 5 else 3))
    SQ = [XF0 + i for i in range(8)] + [XF1 + i for i in range(5)]
    A9 = [XF0 + 8, XF0 + 12, XF1 + 8, XF1 + 12]
    contract(lambda pr, u: (f"v_dot2_f32_bf16 v{SQ[u]}, v{R[u]+pr}, v{Y+4*u+pr}, 0" if pr == 0 else f"v_dot2c_f32_bf16 v{SQ[u]}, v{R[u]+pr}, v{Y+4*u+pr}"),
             [[]]*4 + [cap(lambda q=q: e(f"ds_read_b128 {vr(A9[q], 4)}, v{aA} offset:{AIM + q*512}", "a9")) for q in range(4)], "q", (), cap(lambda: (final_pre2(), final_pre1())))
    em.wlg("a9")
    P2 = BK[0]
    e(f"v_fmac_f32 v{vD}, v{A9[3]}, v{SQ[12]}")
    e(f"v_pk_mul_f32 {v2(P2)}, {v2(A9[0])}, {v2(SQ[0])}"); e(f"v_pk_mul_f32 {v2(P2+2)}, {v2(A9[0]+2)}, {v2(SQ[2])}")
    e(f"v_pk_fma_f32 {v2(vD)}, {v2(A9[1])}, {v2(SQ[4])}, {v2(vD)}")
    e(f"v_pk_fma_f32 {v2(P2)}, {v2(A9[1]+2)}, {v2(SQ[6])}, {v2(P2)}"); e(f"v_pk_fma_f32 {v2(P2+2)}, {v2(A9[2])}, {v2(SQ[8])}, {v2(P2+2)}")
    e(f"v_pk_fma_f32 {v2(vD)}, {v2(A9[2]+2)}, {v2(SQ[10])}, {v2(vD)}")
    e(f"v_pk_add_f32 {v2(P2)}, {v2(P2)}, {v2(P2+2)}")
    e(f"v_pk_add_f32 {v2(vD)}, {v2(vD)}, {v2(P2)}")
    e(f"v_add_f32 v{P2}, v{vD}, v{vD+1}")
    e(f"v_add_f32 v{vD+1}, v{vD}, v{vD+1}")
    e(f"v_mov_b32 v{vD}, v{P2}")
    e(f"v_permlane32_swap_b32 v{vD}, v{vD+1}")
    e(f"v_add_f32 v{vD}, v{vD}, v{vD+1}")
    e(f"ds_write_b32 v{aRD}, v{vD}", "rw")

def cross():
    cross_pro()
    for sg in range(14): cross_step(sg, 1)
    cross_mid(1)
    em.jmp("L_ct")
    em.lab("L_r0")
    for sg in range(14): cross_step(sg, 0)
    cross_mid(0)
    em.lab("L_ct")
    TC = cap(cross_tail)
    if "prio" in OPT:
        segs = [[]]
        for x in TC:
            segs[-1].append(x)
            if x.kind == "bar": segs.append([])
        for sg in segs:
            n = len(sg); marks = {0: 3, n // 4: 2, n // 2: 1, 3 * n // 4: 0}
            for i, x in enumerate(sg):
                if i in marks: e(f"s_setprio {marks[i]}")
                em.L.append(x)
    else: put(TC)

aF0, aF1, aF2 = 8, 9, 10
def final_pre(): final_pre1(); final_pre2()
def final_pre1():
    e(f"v_lshlrev_b32 v{aF1}, 3, v{vL}")
    e(f"v_lshlrev_b32 v{aF0}, 5, v{vL}"); e(f"v_add_u32 v{aF0}, {RED}, v{aF0}")
def final_pre2():
    e(f"s_min_u32 s{sT2}, s{sCG}, 2")
    e(f"s_and_b32 s{sT0}, s{sT2}, 1"); e(f"s_lshl_b32 s{sT0}, s{sT0}, 4")
    e(f"s_cmp_lt_u32 s{sCG}, 2"); e(f"s_cselect_b32 s{sT1}, -1, 0"); e(f"s_cselect_b32 s{sT2}, 0, -1")
    e(f"s_lshl_b32 s{sKAP}, s{sZ}, 9")
    e(f"s_mov_b32 s{sBND}, 0x40000")

def final():
    t = [T + i for i in range(16)]
    fin = "L_flush" if STAMPS else "L_end"
    em.wlg("*")
    em.bar(["rw"])
    stamp("t4")
    e(f"s_cmp_lg_u32 s{sW}, 0"); em.br("s_cbranch_scc1", fin, lambda c: c[0] != 0)
    for q in range(2): e(f"ds_read_b128 {vr(t[4*q],4)}, v{aF0} offset:{16*q}", "rr")
    em.wvm("fl")
    em.lab("L_spin")
    e(f"v_readfirstlane_b32 s{sM0}, v{JK}")
    e(f"s_cmp_eq_u32 s{sM0}, 1")
    em.br("s_cbranch_scc1", "L_go", lambda c: True)
    e("s_sleep 2")
    e(f"s_lshr_b32 s{sM0}, s{sZ}, {ZSH}"); e(f"s_lshl_b32 s{sM0}, s{sM0}, {2 + ZSH}")
    e(f"buffer_load_dword v{JK}, off, {srd(S_DBG)}, s{sM0} sc0 sc1")
    e("s_waitcnt vmcnt(0)")
    e(f"s_sub_u32 s{sBND}, s{sBND}, 1")
    e("s_cbranch_scc0 L_spin")
    em.lab("L_go")
    e(f"s_cmp_eq_u32 s{sCG}, 2"); e(f"s_cselect_b32 exec_hi, 0, -1")
    e(f"s_cmp_eq_u32 s{sCG}, 3"); e(f"s_cselect_b32 exec_lo, 0, -1")
    em.wlg("rr")
    for i in (0, 2): e(f"v_pk_add_f32 {v2(t[i])}, {v2(t[i])}, {v2(t[4+i])}")
    e(f"v_pk_add_f32 {v2(t[0])}, {v2(t[0])}, {v2(t[2])}")
    e(f"v_add_f32 v{t[0]}, v{t[0]}, v{t[1]}")
    Hh, Ho = t[4], t[8]
    e(f"v_cvt_pk_bf16_f32 v{t[1]}, v{t[0]}, 0")
    e(f"v_cmp_eq_u32 s[{S_TMP}:{S_TMP+1}], 0, v{t[1]}")
    e(f"v_mov_b32 v{t[2]}, 0x8000")
    e(f"v_lshlrev_b32 v{aF2}, 1, v{vL}")
    e(f"v_cndmask_b32 v{t[1]}, v{t[1]}, v{t[2]}, s[{S_TMP}:{S_TMP+1}]")
    e(f"v_lshlrev_b32 v{t[1]}, s{sT0}, v{t[1]}")
    e(f"v_and_b32 v{Ho}, s{sT1}, v{t[1]}"); e(f"v_and_b32 v{Ho+1}, s{sT2}, v{t[1]}")
    e(f"buffer_atomic_or_x2 {vr(Ho,2)}, v{aF1}, {srd(S_WS)}, s{sKAP} offen sc0 sc1", "at")
    e(f"v_and_b32 v{Hh}, s{sT1}, v{t[1]}"); e(f"v_and_b32 v{Hh+1}, s{sT2}, v{t[1]}")
    e(f"s_lshl_b32 s{sT1}, s{sRG}, 7")
    em.wvm("at")
    for i in range(2): e(f"v_or_b32 v{Ho+i}, v{Ho+i}, v{Hh+i}")
    e(f"v_lshlrev_b32 v{t[0]}, 16, v{Ho}"); e(f"v_and_b32 v{t[1]}, 0xffff0000, v{Ho}"); e(f"v_lshlrev_b32 v{t[2]}, 16, v{Ho+1}")
    e(f"v_min3_u32 v{t[4]}, v{t[0]}, v{t[1]}, v{t[2]}")
    e(f"v_cmp_ne_u32 vcc, 0, v{t[4]}")
    e(f"v_add_f32 v{t[0]}, v{t[0]}, v{t[1]}")
    e(f"s_and_b64 exec, exec, vcc")
    em.br("s_cbranch_execz", fin, lambda c: False)
    e(f"v_add_f32 v{t[0]}, v{t[0]}, v{t[2]}")
    e(f"v_cvt_pk_bf16_f32 v{t[0]}, v{t[0]}, v{t[0]}")
    e(f"buffer_store_short v{t[0]}, v{aF2}, {srd(S_OUT)}, s{sT1} offen")
    if STAMPS:
        em.lab("L_flush")
        e("s_waitcnt vmcnt(0)")
        e("s_memtime s[4:5]"); e("s_memrealtime s[6:7]"); e("s_waitcnt lgkmcnt(0)")
        e(f"s_lshl_b32 s8, s2, 4"); e(f"s_add_u32 s8, s8, s{sW}"); e("s_lshl_b32 s8, s8, 7"); e("s_add_u32 s8, s8, 0x100000")
        e("s_mov_b64 exec, 1"); e("v_mov_b32 v3, 0")
        for k in range(len(SN)):
            e(f"v_mov_b32 v4, s{sreg(k)}")
            e(f"buffer_store_dword v4, v3, {srd(S_WS)}, s8 offen offset:{4*k}"); e("s_nop 2")
        e("v_mov_b32 v4, s4"); e(f"buffer_store_dword v4, v3, {srd(S_WS)}, s8 offen offset:{4*len(SN)}"); e("s_nop 2")
        SN.append("end")
        e("v_mov_b32 v4, s100"); e(f"buffer_store_dword v4, v3, {srd(S_WS)}, s8 offen offset:124"); e("s_nop 2")
        e("v_mov_b32 v4, s6"); e(f"buffer_store_dword v4, v3, {srd(S_WS)}, s8 offen offset:120")
        e("s_waitcnt vmcnt(0)")

def main():
    prologue()
    e(f"s_cmp_ge_u32 s{sCG}, 2"); em.br("s_cbranch_scc1", "L_cross", lambda c: c[1] >= 2)
    deep()
    em.jmp("L_final")
    em.lab("L_cross")
    cross()
    em.lab("L_final")
    final()
    em.lab("L_end")
    e("s_endpgm")
    ctxs = [(w, cg) for cg in range(4) for w in range(8)]
    L, nfix = resolve(em.L, ctxs, verbose=bool(os.environ.get("V")))
    out = ["; Kernarg: in0 idx, in1 table, in2 se_w1, in3 se_w2, in4 w_bi, in5 w_cross, in6 w_deep1, in7 w_deep2, out, debug, ws",
           "; generated by gen/h14.py -- 256 WGs (64 row groups x {2 deep, 2 cross}) x 8 waves",
           f"; @launch grid=(256,1,1) block=(512,1,1) lds={LDS_TOTAL}"]
    if STAMPS: out.append("; STAMPS: " + " ".join(SN))
    out += ['.amdgcn_target "amdgcn-amd-amdhsa--gfx950"', ".text", f".globl {KN}", ".p2align 8", f".type {KN},@function", f"{KN}:"]
    body = "\n".join(render(L))
    def sub(nbytes):
        nlq = (nbytes // 128 + 4) // 4
        return body.replace("NLQ*128", str(nlq * 128)).replace("NLQ", str(nlq)).replace("NLMAX", str(nbytes - 64))
    import subprocess
    open("_sz.s", "w").write('.amdgcn_target "amdgcn-amd-amdhsa--gfx950"\n.text\n' + sub(20480) + "\n")
    subprocess.run(["clang", "-x", "assembler", "-target", "amdgcn-amd-amdhsa", "-mcpu=gfx950", "-c", "_sz.s", "-o", "_sz.o"], check=True)
    r = subprocess.run("llvm-readelf -S _sz.o | grep ' .text'", shell=True, capture_output=True, text=True)
    f = r.stdout.split(); nbytes = int(f[f.index("PROGBITS") + 3], 16); print("code bytes", nbytes)
    out.append(sub(nbytes))
    out += ['.section .rodata,"a"', ".p2align 6", f".amdhsa_kernel {KN}", "  .amdhsa_next_free_vgpr 256", "  .amdhsa_next_free_sgpr 102",
            "  .amdhsa_accum_offset 256", "  .amdhsa_group_segment_fixed_size 0", "  .amdhsa_kernarg_size 88", "  .amdhsa_user_sgpr_count 2",
            "  .amdhsa_user_sgpr_kernarg_segment_ptr 1", "  .amdhsa_system_sgpr_workgroup_id_x 1", ".end_amdhsa_kernel"]
    open(sys.argv[1], "w").write("\n".join(out) + "\n")
    print("nops inserted:", nfix, "instr:", sum(1 for x in L if x.kind in ("i", "br", "bar")))
main()
```
